```python
import torch

def _softmax(x, axis=-1):
    return torch.softmax(x, dim=axis)
def _gelu(x):
    return torch.nn.functional.gelu(x, approximate="tanh")
def _silu(x):
    return torch.nn.functional.silu(x)
def _sigmoid(x):
    return torch.sigmoid(x)
def _layernorm(x, axis=-1, eps=1e-5):
    m = x.mean(dim=axis, keepdim=True)
    v = x.var(dim=axis, keepdim=True, unbiased=False)
    return (x - m) / torch.sqrt(v + eps)
def _scatter_add(tgt, idx, src, axis=0):
    return tgt.clone().index_add_(axis, idx, src)
def _segment_sum(src, seg, n):
    out = torch.zeros((n,) + src.shape[1:], dtype=src.dtype)
    return out.index_add_(0, seg, src)
def _pad(x, pw):
    flat = tuple(v for pair in reversed(pw) for v in pair)
    return torch.nn.functional.pad(x, flat)

kernel_name = 'recurrent_scan__linear_attn_block__dense_activation_silu__prompt'

def setup_inputs():

    _w = (lambda a: (lambda t: t.to(torch.bfloat16) if t.is_floating_point() else t)(torch.as_tensor(a)))
    def _A_setup():
        B, S, D = 1, 2048, 640
        return {
            "x": _w((lambda *s: torch.randn(*s, dtype=torch.bfloat16) * 0.05)(B, S, D)),
            "wqkv": _w((lambda *s: torch.randn(*s, dtype=torch.bfloat16) * 0.2)(D, 3 * D)),
            "wo": _w((lambda *s: torch.randn(*s, dtype=torch.bfloat16) * 0.2)(D, D)),
        }
    _A_in = _A_setup()

    def _B_setup():
        B, S, D, F = 1, 2048, 640, 1728
        return {
            "x": _w((lambda *s: torch.randn(*s, dtype=torch.bfloat16) * 0.05)(B, S, D)),
            "w1": _w((lambda *s: torch.randn(*s, dtype=torch.bfloat16) * 0.8)(D, F) * (D ** -0.5)),
            "w2": _w((lambda *s: torch.randn(*s, dtype=torch.bfloat16) * 0.1)(F, D) * (F ** -0.5)),
        }
    _B_in = _B_setup()

    return {
        "A_x": _A_in["x"],
        "A_wqkv": _A_in["wqkv"],
        "A_wo": _A_in["wo"],
        "B_x": _B_in["x"],
        "B_w1": _B_in["w1"],
        "B_w2": _B_in["w2"],
    }

def reference(A_x, A_wqkv, A_wo, B_x, B_w1, B_w2):
    def _A_ref(x, wqkv, wo):
        B, S, D = x.shape
        H = 32; Dh = D // H
        qkv = (lambda x, *d: x.permute(*d))((x @ wqkv).reshape(B, S, 3, H, Dh), 2, 0, 3, 1, 4)
        q, k, v = qkv[0], qkv[1], qkv[2]
        phi = lambda t: torch.where(t > 0, t + 1, torch.exp(t)) + 1e-6
        pq, pk = phi(q), phi(k)
        kv = torch.einsum("bhsd,bhse->bhde", pk, v)
        z = torch.einsum("bhsd->bhd", pk)
        num = torch.einsum("bhqd,bhde->bhqe", pq, kv)
        den = torch.einsum("bhqd,bhd->bhq", pq, z)[..., None] + 1e-6
        o = num / den
        return (lambda x, *d: x.permute(*d))(o, 0, 2, 1, 3).reshape(B, S, D) @ wo

    def _B_ref(x, w1, w2):
        h = torch.einsum("bsd,df->bsf", x, w1)
        h = _silu(h)
        out = torch.einsum("bsf,fd->bsd", h, w2)
        return out

    x = A_x
    xn = _layernorm(x, axis=-1)
    s = _A_ref(xn, A_wqkv, A_wo)
    g = _silu(_B_ref(xn, B_w1, B_w2))
    return x + s * g
```

```python
import re

_REG = re.compile(r'(?<![\w.])([vsa])(\d+)(?![\w\[])|(?<![\w.])([vsa])\[(\d+):(\d+)\]')

def regs_of(tok):
    out = set()
    for m in _REG.finditer(tok):
        if m.group(1):
            out.add((m.group(1), int(m.group(2))))
        else:
            for i in range(int(m.group(4)), int(m.group(5)) + 1):
                out.add((m.group(3), i))
    if re.search(r'\bvcc\b', tok): out |= {('s', 'vcc')}
    if re.search(r'\bexec\b', tok): out |= {('s', 'exec')}
    if re.search(r'\bm0\b', tok): out |= {('s', 'm0')}
    return out

TRANS = ('v_exp_f32', 'v_log_f32', 'v_rcp_f32', 'v_rsq_f32', 'v_sqrt_f32', 'v_sin_f32', 'v_cos_f32')

class Ins:
    def __init__(self, text):
        self.text = text
        t = text.split(';')[0].strip()
        self.label = t[:-1] if t.endswith(':') else None
        self.op = ''
        self.kind = 'none'
        self.defs = set(); self.uses = set()
        self.states = 0
        self.target = None
        if self.label or not t or t.startswith('.'):
            return
        parts = t.split(None, 1)
        op = self.op = parts[0]
        rest = parts[1] if len(parts) > 1 else ''
        ops = [x.strip() for x in re.split(r',(?![^\[]*\])', rest)] if rest else []
        self.ops = ops
        self.states = 1
        R = regs_of
        if op == 's_nop':
            self.kind = 'nop'; self.states = int(ops[0], 0) + 1
        elif op.startswith('v_mfma'):
            self.kind = 'mfma'
            self.defs = R(ops[0]); self.ab = R(ops[1]) | R(ops[2]); self.c = R(ops[3]); self.uses = self.ab | self.c
            self.passes = 8 if '32x32' in op else 4
        elif op.startswith('v_'):
            self.kind = 'valu'
            self.trans = any(op.startswith(x) for x in TRANS)
            self.dpp = ('row_' in rest) or ('quad_perm' in rest) or op.endswith('_dpp')
            self.perm = op.startswith('v_permlane')
            self.rdlane = op.startswith('v_readfirstlane') or op.startswith('v_readlane')
            self.defs = R(ops[0])
            for o in ops[1:]: self.uses |= R(o)
            if op.startswith(('v_fmac', 'v_dot2c', 'v_writelane')) or self.dpp: self.uses |= R(ops[0])
            if self.perm:
                self.defs |= R(ops[1]); self.uses |= R(ops[0])
            if op.startswith(('v_add_co', 'v_sub_co', 'v_addc_co', 'v_subb_co')):
                self.defs |= R(ops[1])
            if op.startswith('v_cmpx'): self.defs |= {('s', 'exec')}
        elif op.startswith('ds_'):
            self.kind = 'ds'
            if op.startswith(('ds_read', 'ds_bpermute', 'ds_swizzle')) or '_rtn' in op:
                self.defs = R(ops[0])
                for o in ops[1:]: self.uses |= R(o)
            else:
                for o in ops: self.uses |= R(o)
        elif op.startswith(('buffer_', 'global_')):
            self.kind = 'vmem'
            self.lds = bool(re.search(r'\blds\b', rest))
            self.wide_store = False
            if 'load' in op and not self.lds:
                self.defs = R(ops[0])
                for o in ops[1:]: self.uses |= R(o)
            else:
                for o in ops: self.uses |= R(o)
                if 'store' in op and ('x4' in op or 'x3' in op):
                    self.wide_store = True
                    self.data = R(ops[0]) if op.startswith('buffer_') else R(ops[1])
                if 'atomic' in op and re.search(r'\bsc0\b', rest): self.defs = R(ops[0])
            if self.lds: self.uses |= {('s', 'm0')}
        elif op.startswith(('s_cbranch', 's_branch')):
            self.kind = 'branch'; self.target = ops[0]
        elif op.startswith('s_'):
            self.kind = 'salu'
            if op.startswith(('s_cmp', 's_waitcnt', 's_barrier', 's_sleep', 's_setprio', 's_endpgm', 's_bitcmp')):
                for o in ops: self.uses |= R(o)
            else:
                self.defs = R(ops[0]) if ops else set()
                for o in ops[1:]: self.uses |= R(o)

def need(P, C):
    n = 0
    vd = {r for r in P.defs if r[0] in 'va'}
    sd = {r for r in P.defs if r[0] == 's'}
    if P.kind == 'valu':
        if C.kind == 'mfma' and vd & C.uses: n = max(n, 2)
        if C.kind == 'valu':
            if P.trans and vd & (C.uses | C.defs): n = max(n, 1)
            if C.rdlane and vd & C.uses: n = max(n, 1)
            if (C.perm or C.dpp) and vd & C.uses: n = max(n, 2)
            if sd & C.uses: n = max(n, 4 if C.rdlane or C.op.startswith('v_writelane') else 2)
            if ('s', 'exec') in sd: n = max(n, 5)
        if C.kind == 'mfma' and ('s', 'exec') in sd: n = max(n, 4)
        if C.kind == 'vmem' and sd & C.uses: n = max(n, 5)
        if C.kind in ('salu', 'branch') and sd & C.uses: n = max(n, 1)
        if P.trans and C.kind in ('ds', 'vmem') and vd & C.uses: n = max(n, 1)
    elif P.kind == 'mfma':
        big = 8 if P.passes == 4 else 12
        if C.kind == 'mfma':
            if vd & C.ab: n = max(n, big)
            if vd & C.c and not (vd == C.c and P.op == C.op): n = max(n, big - 2)
        elif C.kind in ('valu', 'ds', 'vmem'):
            if vd & (C.uses | C.defs): n = max(n, big)
            if C.kind == 'valu' and P.c & C.defs: n = max(n, 3 if P.passes == 4 else 7)
    elif P.kind == 'salu':
        if ('s', 'm0') in sd and C.kind == 'vmem' and C.lds: n = max(n, 1)
    elif P.kind == 'vmem' and P.wide_store:
        if C.kind in ('valu', 'mfma', 'ds', 'vmem') and P.data & C.defs: n = max(n, 2)
    return n

MAXD = 13

def fix_hazards(lines):
    ins = [Ins(l) for l in lines]
    changed = True
    total = 0
    while changed:
        changed = False
        srcs = {}
        for i, x in enumerate(ins):
            if x.target: srcs.setdefault(x.target, []).append(i)
        out = []
        for i, C in enumerate(ins):
            if C.states and C.kind != 'nop':
                worst = 0
                stack = [(i - 1, 0)]
                seen = set()
                while stack:
                    j, d = stack.pop()
                    while j >= 0 and d < MAXD:
                        if (j, d) in seen: break
                        seen.add((j, d))
                        P = ins[j]
                        if P.label:
                            for s in srcs.get(P.label, []): stack.append((s, d))
                            k = j - 1
                            while k >= 0 and ins[k].states == 0 and not ins[k].label: k -= 1
                            if k >= 0 and ins[k].op in ('s_branch', 's_endpgm'): break
                        elif P.states:
                            r = need(P, C) - d
                            worst = max(worst, r)
                            d += P.states
                        j -= 1
                if worst > 0:
                    out.append(Ins(f"s_nop {worst-1}"))
                    total += 1
                    changed = True
                    out.extend(ins[i:])
                    break
            out.append(C)
        ins = out
    return [x.text for x in ins], total

def fix_hazards_fast(lines):
    ins = []
    src_lines = [Ins(l) for l in lines]
    total = 0
    for C in src_lines:
        if C.states and C.kind != 'nop':
            worst = 0; d = 0; j = len(ins) - 1
            while j >= 0 and d < MAXD:
                P = ins[j]
                if P.op in ('s_branch', 's_endpgm') and d == 0 and False: break
                if P.states:
                    worst = max(worst, need(P, C) - d)
                    d += P.states
                j -= 1
            if worst > 0:
                ins.append(Ins(f"s_nop {worst-1}")); total += 1
        ins.append(C)
    l2, t2 = fix_hazards([x.text for x in ins])
    return l2, total + t2

class Asm:
    def __init__(self):
        self.L = []
        self.uid = 0
    def __call__(self, s):
        for x in s.split('\n'):
            x = x.strip()
            if x: self.L.append(x)
    def label(self, name): self.L.append(name + ':')
    def newlabel(self, p='L'):
        self.uid += 1
        return f"{p}_{self.uid}"
    def text(self):
        lines, n = fix_hazards_fast(self.L)
        self.nops = n
        return "\n".join(x if x.endswith(':') or x.startswith('.') else "    " + x for x in lines)

class VM:
    def __init__(self, A):
        self.A = A; self.n = 0; self.done = 0
    def issue(self, s):
        self.A(s); self.n += 1
        return self.n
    def wait(self, tag):
        if tag <= self.done: return
        k = min(self.n - tag, 63)
        self.A(f"s_waitcnt vmcnt({k})")
        self.done = self.n - k
    def wait_all(self):
        self.A("s_waitcnt vmcnt(0)"); self.done = self.n

class Alloc:
    def __init__(self, start, limit):
        self.p = start; self.limit = limit
    def get(self, n=1, align=1):
        self.p = (self.p + align - 1) // align * align
        r = self.p; self.p += n
        assert self.p <= self.limit, f"out of registers {self.p}"
        return r

def vr(b, n=1):
    return f"v{b}" if n == 1 else f"v[{b}:{b+n-1}]"
def sr(b, n=1):
    return f"s{b}" if n == 1 else f"s[{b}:{b+n-1}]"
```

```python
import sys, os
sys.path.insert(0, os.path.dirname(os.path.abspath(__file__)))
from asmlib import *

NAME = "recurrent_scan__linear_attn_block__dense_activation_silu__prompt"
KN = NAME + "_kernel"

RT_STRIDE = 74 * 1024
ACT_SIZE = 128 * RT_STRIDE
MI_BASE = 0xA00000
G_M, G_R, G_CS, G_KV = 0, 8192, 16384, 75776
FL = 131072
F_H, F_KV, F_O = FL, FL + 1024 * 128, FL + 1280 * 128
MI_SIZE = FL + 2048 * 128
STAMP = 0x100000
OOB = 0x7F000000

MISC = 159744
E_CS, E_ST, T_M, T_R, T_CS = MISC, MISC + 1024, MISC + 1152, MISC + 2176, MISC + 3200
LDS_BYTES = 163840
B2_SLOTS, B2_SZ = 18, 8192
TRASH = MISC + 3984
CNT = MISC + 4032

sX, sW, sACT, sMI, sDBG, sW2, sWO, sOUT, sE = 24, 28, 32, 36, 40, 44, 48, 52, 64
sWave, sRole, sM0, sG, sM2, sN2, sMt, sP2 = 56, 57, 58, 59, 60, 61, 62, 63
sER, sEL, sEK = 68, 69, 70
sPend = 71
sT = 72
sStamp = 88

LOG2E = 1.4426950408889634
def p2(b): return f"v[{b}:{b+1}]"
def f2u(x):
    import struct
    return "0x%08x" % struct.unpack("<I", struct.pack("<f", x))[0]

class Cfg:
    diag = False
    stop_after = None
    spin = 200000
    lite = 0
    dbg = None
    bstamp = 0
    cyc = 0
    hstamp = 0
    lprio = 3
    lprio2 = 0
    thr = 4
    npre = 20
    thr2 = 2
    D = 4
    t4 = 22
    osleep = 2
    siglag = 3
    olag = 6
    psleep = 6
    qsleep = 8
    kvdelay = 40
    tcol = 1
    tpub = 4
    ttab = 7
    twarm = 99
    tswarm = [1, 2, 4, 5]
    ccol = 1
    look = [1,6,6,8,20]
    pfH = [0,0,0,0,0,1,1,1,3]
    pfK = [0,0,0,0,0,0,0,0,3]
    nregH = 13
    nregK = 19
    poll0H = 8
    poll0K = 12
    pollp = 3
    kpoll = 14
    csleep = 6
    trig = 1
    owin = 2
    nx1 = 19
    t3 = 19
    tg = 28
    owner = 0
    p2st = None
    ngap = 10
    ngap2 = 14
    n8H = 2
    n8K = 0
    x_st = 0
    early12 = 0
    x_noepi = 0
    l2warm = 0
    x_nostore = 0
    x_noatom = 0
    x_pdelay = 0
    x_latesig = 0
    sigpre = 1
    estamp = 0
    clk0 = 0
    clk1 = 11

def srd(A, d, lo, hi, size):
    A(f"s_mov_b32 s{d}, {lo}"); A(f"s_mov_b32 s{d+1}, {hi}")
    A(f"s_mov_b32 s{d+2}, {size}"); A(f"s_mov_b32 s{d+3}, 0x20000")

def stamp(A, cfg, i, late=False):
    if cfg.lite and i != 11: return
    if cfg.bstamp and getattr(cfg, "in_loader", False) and not late: return
    if (cfg.hstamp or cfg.p2st) and getattr(cfg, "mute", False) and not late: return
    if cfg.lite: A("s_waitcnt vmcnt(0)")
    if cfg.diag and i in (cfg.clk0, cfg.clk1) and not cfg.lite:
        A(f"s_memtime s[{sT+14}:{sT+15}]")
        A("s_waitcnt lgkmcnt(0)")
        A(f"s_mov_b32 s{sStamp+(12 if i == cfg.clk0 else 13)}, s{sT+14}")
    if cfg.diag:
        A(f"{'s_memtime' if cfg.cyc else 's_memrealtime'} s[{sT+14}:{sT+15}]")
        A("s_waitcnt lgkmcnt(0)")
        A(f"s_mov_b32 s{sStamp+i}, s{sT+14}")

def dump_stamps(A, cfg):
    if not cfg.diag: return
    if cfg.dbg:
        A("s_waitcnt vmcnt(0) lgkmcnt(0)")
        A("s_mov_b64 exec, 1"); A("v_mov_b32 v1, 0")
        for i, (role, wave, st, op) in enumerate(cfg.dbg):
            sk = A.newlabel("dbg")
            A(f"s_cmp_lg_u32 s{sWave}, {wave}"); A(f"s_cbranch_scc1 {sk}")
            if role is not None:
                A(f"s_cmp_lg_u32 s{sRole}, {role}"); A(f"s_cbranch_scc1 {sk}")
            A(f"s_and_b32 s{sT}, s{sStamp+st}, 0xffffff")
            if op == 'min': A(f"s_sub_u32 s{sT}, 0x1000000, s{sT}")
            A(f"v_mov_b32 v2, s{sT}")
            A(f"buffer_atomic_{'add' if op == 'sum' else 'umax'} v2, v1, s[{sDBG}:{sDBG+3}], 0 offen offset:{4*i}")
            A.label(sk)
        A("s_waitcnt vmcnt(0)")
        return
    A("s_waitcnt vmcnt(0) lgkmcnt(0)")
    A(f"s_lshl_b32 s{sT}, s2, 3"); A(f"s_add_u32 s{sT}, s{sT}, s{sWave}"); A(f"s_lshl_b32 s{sT}, s{sT}, 6")
    A(f"s_add_u32 s{sT}, s{sT}, {STAMP}")
    A(f"s_mov_b32 s{sMI+2}, {STAMP + 256*8*64}")
    A("s_mov_b64 exec, 1")
    A("v_mov_b32 v1, 0")
    if cfg.lite:
        A(f"s_cmp_ge_u32 s{sWave}, 4"); A("s_cbranch_scc1 L_end")
    for i in ((0, 11) if cfg.lite else range(14)):
        A(f"v_mov_b32 v2, s{sStamp+i}")
        A(f"buffer_store_dword v2, v1, s[{sMI}:{sMI+3}], s{sT} offen offset:{4*i}")
    A("s_waitcnt vmcnt(0)")

def poll(A, cfg, vdst, vaddr, srdb, want, first_issued=False, sleep=4):
    top = A.newlabel("poll"); chk = A.newlabel("pchk"); done = A.newlabel("pdone")
    A(f"s_mov_b32 s{sT+13}, {cfg.spin}")
    if first_issued: A(f"s_branch {chk}")
    A.label(top)
    A(f"buffer_load_dword v{vdst}, v{vaddr}, s[{srdb}:{srdb+3}], 0 offen sc1")
    A("s_waitcnt vmcnt(0)")
    A.label(chk)
    A(f"v_cmp_ne_u32 vcc, {want}, v{vdst}")
    A("s_nop 1")
    A("s_cmp_eq_u64 vcc, 0")
    A(f"s_cbranch_scc1 {done}")
    if sleep: A(f"s_sleep {sleep}")
    A(f"s_sub_u32 s{sT+13}, s{sT+13}, 1")
    A(f"s_cmp_lg_u32 s{sT+13}, 0")
    A(f"s_cbranch_scc1 {top}")
    A.label(done)

def divc(A, vq, vx, c, vt=None):
    m = (1 << 20) // c + 1
    A(f"v_mul_u32_u24 v{vq}, {m}, v{vx}")
    A(f"v_lshrrev_b32 v{vq}, 20, v{vq}")

def prologue(A, cfg):
    xcd, slot, quar, c, t = [sT + i for i in range(5)]
    A("s_cmp_ge_u32 s2, 256")
    A("s_cbranch_scc1 L_end")
    if cfg.diag: A(f"{'s_memtime' if cfg.cyc else 's_memrealtime'} s[22:23]")
    A(f"s_getpc_b64 s[{sT+8}:{sT+9}]")
    A.label("L_pc")
    A("s_load_dwordx16 s[4:19], s[0:1], 0")
    A("s_load_dwordx2 s[20:21], s[0:1], 64")
    A(f"s_lshr_b32 s{slot}, s2, 3")
    A("v_lshrrev_b32 v1, 5, v0"); A(f"v_lshl_add_u32 v1, s{slot}, 4, v1"); A("v_lshlrev_b32 v1, 7, v1")
    A("v_min_u32 v1, L_end-L_pc, v1")
    A(f"global_load_dword v255, v1, s[{sT+8}:{sT+9}]")
    A("v_lshrrev_b32 v1, 6, v0")
    A("v_and_b32 v0, 63, v0")
    A(f"v_readfirstlane_b32 s{sWave}, v1")
    A(f"s_and_b32 s{quar}, s2, 3"); A(f"s_and_b32 s{c}, s{slot}, 3")
    A(f"s_bfe_u32 s{t}, s2, 0x10002"); A(f"s_mul_i32 s{sMt}, s{t}, 7")
    A(f"s_lshr_b32 s{t}, s2, 5"); A(f"s_add_u32 s{sMt}, s{sMt}, s{t}"); A(f"s_sub_u32 s{sMt}, s{sMt}, 1")
    A(f"s_cmp_lt_u32 s{c}, 2"); A(f"s_cselect_b32 s{sRole}, 1, 0")
    A(f"s_and_b32 s{t}, s{c}, 1"); A(f"s_lshl1_add_u32 s{sG}, s{quar}, s{t}")
    A(f"s_lshl2_add_u32 s{t}, s{quar}, s{c}")
    A(f"s_cmp_eq_u32 s{sMt}, 13")
    A(f"s_cselect_b32 s{sRole}, 0, s{sRole}"); A(f"s_cselect_b32 s{sG}, 8, s{sG}"); A(f"s_cselect_b32 s{sMt}, s{t}, s{sMt}")
    A(f"s_and_b32 s{t}, s2, 4"); A(f"s_add_u32 s{t}, s{t}, s{slot}")
    A(f"s_cmp_lt_u32 s{slot}, 4")
    A(f"s_cselect_b32 s{sRole}, 2, s{sRole}"); A(f"s_cselect_b32 s{sG}, s{quar}, s{sG}")
    A(f"s_cselect_b32 s{sMt}, s{t}, s{sMt}"); A(f"s_cselect_b32 s{t}, 8, 5")
    A(f"s_mul_i32 s{sM0}, s{sMt}, s{t}"); A(f"s_lshl_b32 s{sM0}, s{sM0}, 5")
    A(f"s_cmp_lt_u32 s{sWave}, 4")
    A("s_cbranch_scc1 L_cons")

def diag_init(A, cfg):
    if cfg.diag:
        if not cfg.lite:
            for i in range(14): A(f"s_mov_b32 s{sStamp+i}, 0")
        A(f"s_mov_b32 s{sStamp}, s22")
        if cfg.clk0 == 0 and not cfg.lite:
            A(f"s_memtime s[{sT+14}:{sT+15}]"); A("s_waitcnt lgkmcnt(0)"); A(f"s_mov_b32 s{sStamp+12}, s{sT+14}")

def srd_mi(A):
    A(f"s_add_u32 s{sMI}, s20, {MI_BASE}"); A(f"s_addc_u32 s{sMI+1}, s21, 0")
    A(f"s_mov_b32 s{sMI+2}, {MI_SIZE}"); A(f"s_mov_b32 s{sMI+3}, 0x20000")

def decode_early(A, t):
    A(f"s_and_b32 s{t}, s2, 7"); A(f"s_lshl_b32 s{sER}, s{t}, 8"); A(f"s_and_b32 s{t}, s2, 0xf8"); A(f"s_add_u32 s{sER}, s{sER}, s{t}")

def decode_cols(A, t):
    A(f"s_mul_i32 s{sEK}, s2, 1150"); A(f"s_lshr_b32 s{sEK}, s{sEK}, 16")
    A(f"s_mul_i32 s{t}, s{sEK}, 57"); A(f"s_sub_u32 s{sEL}, s2, s{t}")

def decode_p2(A, cfg, t, u):
    A(f"s_bfe_u32 s{t}, s2, 0x20001"); A(f"s_mul_i32 s{t}, s{t}, 28"); A(f"s_lshr_b32 s{u}, s2, 3")
    A(f"s_add_u32 s{t}, s{t}, s{u}"); A(f"s_sub_u32 s{t}, s{t}, 4")
    A(f"s_cmp_lt_u32 s{t}, 110"); A(f"s_cselect_b32 s{sP2}, 1, 0")
    A(f"s_mul_i32 s{sM2}, s{t}, 13108"); A(f"s_lshr_b32 s{sM2}, s{sM2}, 16")
    A(f"s_mul_i32 s{sN2}, s{sM2}, 5"); A(f"s_sub_u32 s{sN2}, s{t}, s{sN2}")
    A(f"s_and_b32 s{t}, s2, 1"); A(f"s_mul_i32 s{t}, s{t}, 5"); A(f"s_add_u32 s{sN2}, s{sN2}, s{t}")
    if cfg.stop_after == 'p1': A(f"s_mov_b32 s{sP2}, 0")

def bf16r(A, v, t):
    A(f"v_cvt_pk_bf16_f32 v{t}, v{v}, v{v}")
    A(f"v_lshlrev_b32 v{v}, 16, v{t}")

def sum32(A, v, t):
    for r in (8, 4, 2, 1):
        A(f"v_add_f32_dpp v{v}, v{v}, v{v} row_ror:{r} row_mask:0xf bank_mask:0xf")
    A(f"v_mov_b32 v{t}, v{v}")
    A(f"v_permlane16_swap_b32 v{v}, v{t}")
    A(f"v_add_f32 v{v}, v{v}, v{t}")

def col_issue(A, issue, w, a, b, c, CW):
    t0, t1, st = sT + 1, sT + 2, sT + 3
    decode_cols(A, t0)
    A(f"s_cmp_ge_u32 s{sEL}, 30")
    A(f"s_cselect_b32 s{sE}, s12, s6"); A(f"s_cselect_b32 s{sE+1}, s13, s7")
    A(f"s_mov_b32 s{st}, 3456"); A(f"s_cselect_b32 s{st}, s{st}, 3840")
    A(f"s_cselect_b32 s{t1}, 30, 0"); A(f"s_mul_i32 s{sE+2}, s{st}, 640"); A(f"s_mov_b32 s{sE+3}, 0x20000")
    A(f"s_sub_u32 s{t1}, s{sEL}, s{t1}"); A(f"s_lshl_b32 s{t1}, s{t1}, 7")
    A(f"s_lshl2_add_u32 s{t0}, s{sEK}, s{w}"); A(f"s_mul_i32 s{t0}, s{t0}, 40")
    A(f"s_mul_i32 s{t0}, s{t0}, s{st}"); A(f"s_add_u32 s{t0}, s{t0}, s{t1}")
    A(f"v_mul_u32_u24 v{c}, s{st}, v{a}"); A(f"v_lshl_add_u32 v{c}, v{b}, 4, v{c}")
    A(f"s_lshl_b32 s{st}, s{st}, 3")
    for i in range(5):
        r = issue(f"buffer_load_dwordx4 v[{CW+4*i}:{CW+4*i+3}], v{c}, s[{sE}:{sE+3}], s{t0} offen")
        if i < 4: A(f"s_add_u32 s{t0}, s{t0}, s{st}")
    return r

def col_sum(A, part, w, b, c, CW, CA, pk=False):
    t0 = sT + 1
    if part == 0:
        for k in range(4):
            A(f"v_lshlrev_b32 v{CA+2*k}, 16, v{CW+k}"); A(f"v_and_b32 v{CA+2*k+1}, 0xffff0000, v{CW+k}")
    for i in ((1, 2, 3) if part == 0 else (4,)):
        for k in range(4):
            A(f"v_lshlrev_b32 v{CA+8}, 16, v{CW+4*i+k}"); A(f"v_and_b32 v{CA+9}, 0xffff0000, v{CW+4*i+k}")
            if pk: A(f"v_pk_add_f32 {p2(CA+2*k)}, {p2(CA+2*k)}, {p2(CA+8)}")
            else:
                A(f"v_add_f32 v{CA+2*k}, v{CA+2*k}, v{CA+8}"); A(f"v_add_f32 v{CA+2*k+1}, v{CA+2*k+1}, v{CA+9}")
    if part == 0: return
    for j in range(4): A(f"v_permlane32_swap_b32 v{CA+j}, v{CA+4+j}")
    for j in range(4): A(f"v_add_f32 v{CA+j}, v{CA+j}, v{CA+4+j}")
    for j in range(2): A(f"v_permlane16_swap_b32 v{CA+j}, v{CA+2+j}")
    for j in range(2): A(f"v_add_f32 v{CA+j}, v{CA+j}, v{CA+2+j}")
    for j in range(2): A(f"v_add_f32_dpp v{CA+j}, v{CA+j}, v{CA+j} row_ror:8 row_mask:0xf bank_mask:0xf")
    A(f"v_lshrrev_b32 v{c}, 4, v0"); A(f"v_lshlrev_b32 v{c}, 3, v{c}"); A(f"v_lshl_add_u32 v{c}, v{b}, 5, v{c}")
    A(f"s_lshl_b32 s{t0}, s{w}, 8"); A(f"s_add_u32 s{t0}, s{t0}, {E_CS}"); A(f"v_add_u32 v{c}, s{t0}, v{c}")
    A(f"ds_write_b64 v{c}, v[{CA}:{CA+1}]")

CV = 168
EV = 200
def early_issue(A, cfg):
    t0, t1, t2 = sT, sT + 1, sT + 10
    e = EV
    decode_early(A, t0)
    A(f"v_and_b32 v{e}, 31, v0"); A(f"v_lshrrev_b32 v{e+1}, 5, v0")
    A(f"s_lshl1_add_u32 s{t0}, s{sWave}, s{sER}"); A(f"s_mul_i32 s{t0}, s{t0}, 1280")
    A(f"v_mul_u32_u24 v{e+1}, 1280, v{e+1}"); A(f"v_lshl_add_u32 v{e+1}, v{e}, 4, v{e+1}")
    A(f"v_cmp_gt_u32 s[{sT+8}:{sT+9}], 16, v{e}")
    A(f"v_mov_b32 v{e+2}, {OOB}"); A(f"v_cndmask_b32 v{e+2}, v{e+2}, v{e+1}, s[{sT+8}:{sT+9}]")
    A("s_waitcnt lgkmcnt(0)")
    srd_mi(A)
    noclr = A.newlabel("noclr")
    A(f"s_cmp_ge_u32 s{sMt}, 13")
    A(f"s_cbranch_scc0 {noclr}")
    A("v_lshlrev_b32 v1, 4, v0")
    A(f"s_sub_u32 s{t2}, s{sMt}, 13"); A(f"s_lshl2_add_u32 s{t2}, s{t2}, s{sWave}")
    A(f"s_mul_i32 s{sT+2}, s{t2}, {11*1024}"); A(f"s_mov_b32 s{sT+3}, 11")
    top = A.newlabel("clr")
    A.label(top)
    A(f"s_cmp_lt_u32 s{sT+2}, {G_KV}"); A(f"s_cselect_b32 s{t1}, -1, 0")
    for k in range(4): A(f"v_mov_b32 v{4+k}, s{t1}")
    A(f"buffer_store_dwordx4 v[4:7], v1, s[{sMI}:{sMI+3}], s{sT+2} offen sc1")
    A(f"s_add_u32 s{sT+2}, s{sT+2}, 1024")
    A(f"s_sub_u32 s{sT+3}, s{sT+3}, 1"); A(f"s_cmp_lg_u32 s{sT+3}, 0"); A(f"s_cbranch_scc1 {top}")
    A("v_lshlrev_b32 v1, 8, v0"); A("v_mov_b32 v2, 0")
    A(f"s_lshl_b32 s{sT+2}, s{t2}, 14"); A(f"s_add_u32 s{sT+2}, s{sT+2}, {FL}")
    A(f"buffer_store_dword v2, v1, s[{sMI}:{sMI+3}], s{sT+2} offen sc1")
    A(f"buffer_store_dword v2, v1, s[{sMI}:{sMI+3}], s{sT+2} offen offset:128 sc1")
    A.label(noclr)
    srd(A, sX, "s4", "s5", 2048 * 1280)
    A(f"buffer_load_dwordx4 v[{e+4}:{e+7}], v{e+1}, s[{sX}:{sX+3}], s{t0} offen")
    A(f"buffer_load_dwordx4 v[{e+8}:{e+11}], v{e+1}, s[{sX}:{sX+3}], s{t0} offen offset:512")
    A(f"buffer_load_dwordx4 v[{e+12}:{e+15}], v{e+2}, s[{sX}:{sX+3}], s{t0} offen offset:1024")
    if cfg.ccol:
        A(f"v_lshrrev_b32 v{CV+20}, 3, v0"); A(f"v_and_b32 v{CV+30}, 7, v0")
        col_issue(A, A, sWave, CV + 20, CV + 30, CV + 31, CV)
    diag_init(A, cfg)
    srd(A, sDBG, "s18", "s19", 256)
    srd(A, sACT, "s20", "s21", ACT_SIZE)
    srd(A, sOUT, "s16", "s17", 2048 * 1280)
    decode_p2(A, cfg, t0, t1)
    A(f"v_mov_b32 v{e}, {CNT}"); A(f"v_mov_b32 v{e+2}, 0"); A(f"v_mov_b32 v{e+3}, 0")
    for k in range(8): A(f"ds_write_b64 v{e}, v[{e+2}:{e+3}] offset:{8*k}")

def early_finish(A, cfg):
    t0, t2 = sT, sT + 10
    e = EV; u = e + 16
    A(f"s_waitcnt vmcnt({5 if cfg.ccol else 0})")
    nogo = A.newlabel("nogo")
    A(f"s_cmp_lt_u32 s{sMt}, 13"); A(f"s_cbranch_scc1 {nogo}")
    A(f"v_mov_b32 v{e}, 1"); A(f"v_mov_b32 v{e+1}, 0"); A(f"s_lshl_b32 s{t0}, s{t2}, 4")
    A("s_mov_b64 exec, 1")
    A(f"buffer_store_dword v{e}, v{e+1}, s[{sDBG}:{sDBG+3}], s{t0} offen offset:64 sc1")
    A("s_mov_b64 exec, -1")
    A.label(nogo)
    m, w, v = e + 40, e + 42, e + 44
    for i in range(12):
        A(f"v_lshlrev_b32 v{u+2*i}, 16, v{e+4+i}")
        A(f"v_and_b32 v{u+2*i+1}, 0xffff0000, v{e+4+i}")
    A(f"v_pk_add_f32 {p2(m)}, {p2(u)}, {p2(u+2)}")
    for i in range(2, 12): A(f"v_pk_add_f32 {p2(m)}, {p2(m)}, {p2(u+2*i)}")
    A(f"v_add_f32 v{m}, v{m}, v{m+1}")
    sum32(A, m, w)
    A(f"v_mul_f32 v{m}, {f2u(-1.0/640)}, v{m}")
    A(f"v_cndmask_b32 v{m+1}, 0, v{m}, s[{sT+8}:{sT+9}]")
    for i in range(12):
        sel = "op_sel_hi:[1,0]" if i < 8 else "op_sel:[0,1] op_sel_hi:[1,1]"
        A(f"v_pk_add_f32 {p2(u+2*i)}, {p2(u+2*i)}, {p2(m)} {sel}")
    A(f"v_pk_mul_f32 {p2(v)}, {p2(u)}, {p2(u)}")
    for i in range(1, 12): A(f"v_pk_fma_f32 {p2(v)}, {p2(u+2*i)}, {p2(u+2*i)}, {p2(v)}")
    A(f"v_add_f32 v{v}, v{v}, v{v+1}")
    sum32(A, v, w)
    A(f"v_mul_f32 v{v}, {f2u(1.0/640)}, v{v}")
    bf16r(A, m, w); bf16r(A, v, w)
    A(f"v_add_f32 v{v}, {f2u(1e-5)}, v{v}"); bf16r(A, v, w)
    A(f"v_sqrt_f32 v{v}, v{v}"); bf16r(A, v, w)
    A(f"v_rcp_f32 v{v}, v{v}")
    A(f"v_lshrrev_b32 v{w}, 5, v0"); A(f"s_lshl_b32 s{t0}, s{sWave}, 3"); A(f"s_add_u32 s{t0}, s{t0}, {E_ST}")
    A(f"v_lshl_add_u32 v{w}, v{w}, 2, s{t0}")
    A(f"ds_write_b32 v{w}, v{m}"); A(f"ds_write_b32 v{w}, v{v} offset:32")

class Tile:
    def __init__(self, name, MT, NT, BM, nA, nB, panel, swap):
        self.name, self.MT, self.NT, self.BM, self.nA, self.nB, self.panel, self.swap = name, MT, NT, BM, nA, nB, panel, swap
        self.a_bytes = BM * 128
        self.stg = self.a_bytes + nB * 4 * 1024
TH = Tile("H", 5, 6, 160, 5, 6, True, True)
TK = Tile("K", 5, 5, 160, 5, 5, False, False)
TQ = Tile("Q", 4, 10, 256, 8, 5, False, True)

def main1(A, cfg, T, pre):
    MT, NT = T.MT, T.NT
    al = Alloc(1, 256)
    vX = [al.get(), al.get()]
    nW = 4 if T.panel else 2
    vW = [al.get() for _ in range(nW)]
    tmp = al.get(3)
    KA = al.get(10) if T is TK else None
    acc0 = al.get(MT * NT * 4, 4)
    acc = lambda mt, nt: acc0 + (mt * NT + nt) * 4
    Wf = [al.get(4, 4) for _ in range(NT)]
    Xf = [[al.get(4, 4) for _ in range(MT)] for _ in range(2)]
    t0, t1 = sT, sT + 1
    wr, wc = sT + 2, sT + 3
    if T is TQ:
        A(f"s_mov_b32 s{wr}, s{sWave}"); A(f"s_mov_b32 s{wc}, 0")
    else:
        A(f"s_lshr_b32 s{wr}, s{sWave}, 1"); A(f"s_and_b32 s{wc}, s{sWave}, 1")
    a, b, c = tmp, tmp + 1, tmp + 2
    A(f"v_and_b32 v{a}, 15, v0"); A(f"v_lshrrev_b32 v{b}, 4, v0"); A(f"v_lshrrev_b32 v{c}, 1, v{a}")
    A(f"v_xor_b32 v{c}, v{c}, v{b}"); A(f"v_lshlrev_b32 v{c}, 4, v{c}"); A(f"v_lshl_add_u32 v{c}, v{a}, 7, v{c}")
    A(f"s_mul_i32 s{t0}, s{wr}, {MT*16*128}")
    A(f"v_add_u32 v{vX[0]}, s{t0}, v{c}"); A(f"v_xor_b32 v{vX[1]}, 64, v{vX[0]}")
    A(f"v_lshrrev_b32 v{a}, 2, v0"); A(f"v_and_b32 v{a}, 3, v{a}")
    A(f"v_lshl_add_u32 v{c}, v{b}, 3, v{a}")
    if T.panel:
        A(f"v_lshrrev_b32 v{a}, 1, v{a}"); A(f"v_and_b32 v{b}, 1, v{b}"); A(f"v_lshl_add_u32 v{a}, v{b}, 1, v{a}")
        A(f"v_lshlrev_b32 v{c}, 7, v{c}"); A(f"v_lshl_add_u32 v{c}, v{a}, 5, v{c}")
        A(f"v_and_b32 v{a}, 3, v0"); A(f"v_lshl_add_u32 v{c}, v{a}, 3, v{c}")
        for j in range(4):
            A(f"s_mul_i32 s{t0}, s{wc}, 6"); A(f"s_add_u32 s{t0}, s{t0}, {j}")
            A(f"s_and_b32 s{t1}, s{t0}, 3"); A(f"s_lshl_b32 s{t1}, s{t1}, 5")
            A(f"s_lshr_b32 s{t0}, s{t0}, 2"); A(f"s_lshl_b32 s{t0}, s{t0}, 13"); A(f"s_add_u32 s{t0}, s{t0}, {T.a_bytes}")
            A(f"v_xor_b32 v{vW[j]}, s{t1}, v{c}"); A(f"v_add_u32 v{vW[j]}, s{t0}, v{vW[j]}")
        waddr = lambda nt, ks, h: (vW[nt & 3], (nt >> 2) * 8192 + ks * 4096 + h * 512)
    else:
        A(f"v_mul_u32_u24 v{c}, 320, v{c}")
        A(f"v_and_b32 v{a}, 3, v0"); A(f"v_lshl_add_u32 v{c}, v{a}, 3, v{c}")
        A(f"v_and_b32 v{b}, 1, v{b}")
        for j in range(2):
            A(f"s_mul_i32 s{t0}, s{wc}, 5"); A(f"s_add_u32 s{t0}, s{t0}, {j}")
            A(f"v_xor_b32 v{a}, s{t0}, v{b}"); A(f"v_lshl_add_u32 v{a}, v{a}, 5, v{c}")
            A(f"v_add_u32 v{vW[j]}, {T.a_bytes}, v{a}")
        waddr = lambda nt, ks, h: (vW[nt & 1], (nt >> 1) * 64 + ks * 32 * 320 + h * 4 * 320)
    if T is TK: kv_scatter_addr(A, KA, wr, wc, acc0)
    for r in range(0, MT * NT * 4, 2): A(f"v_pk_mov_b32 {p2(acc0+r)}, 0, 0")
    early_finish(A, cfg)
    def col_finish():
        A("s_waitcnt vmcnt(0)")
        for part in range(2): col_sum(A, part, sWave, CV + 30, CV + 31, CV, CV + 20, pk=True)
    def rdW(nt, ks, h):
        v, off = waddr(nt, ks, h)
        return f"ds_read_b64_tr_b16 v[{Wf[nt]+2*h}:{Wf[nt]+2*h+1}], v{v} offset:{off}"
    def rdX(mt, ks):
        return f"ds_read_b128 v[{Xf[ks][mt]}:{Xf[ks][mt]+3}], v{vX[ks]} offset:{mt*2048}"
    cnt, pos, dlt = sT + 4, sT + 5, sT + 6
    A(f"s_mov_b32 s{cnt}, 9"); A(f"s_mov_b32 s{pos}, 0")
    class R: pass
    R.acc = staticmethod(acc); R.acc0 = acc0; R.free0 = acc0 + MT * NT * 4; R.wr = wr; R.wc = wc; R.KA = KA
    R.Wf = Wf; R.Xf = Xf; R.top = al.p; R.tmp = tmp
    tab_reads, late_reads, setup = pre(A, R)
    if cfg.ccol: col_finish()
    A("s_waitcnt lgkmcnt(0)")
    stamp(A, cfg, 1)
    A("s_barrier")
    stamp(A, cfg, 2)
    for mt in range(MT): A(rdX(mt, 0))
    for nt in range(NT):
        A(rdW(nt, 0, 0)); A(rdW(nt, 0, 1))
    A("s_waitcnt lgkmcnt(0)")
    G = NT * MT; S = 2 * G
    def plan(last):
        gaps = [[] for _ in range(S)]
        occupied = lambda g: len(gaps[g]) >= 1
        def first_free(g):
            while g < S - 1 and occupied(g): g += 1
            return g
        for nt in range(NT):
            for h in range(2): gaps[first_free(nt * MT + MT - 1)].append(('W', nt, 1, h))
        for mt in range(MT): gaps[first_free(0)].append(('X', mt, 1))
        last0 = max(i for i in range(S) if gaps[i])
        bar = last0 + 7
        if last:
            for i, x in enumerate(tab_reads): gaps[first_free(0)].append(('D', i, x))
            if T is not TQ:
                gaps[bar].append(('F',))
            for nt, x in late_reads: gaps[first_free(G + nt * MT + MT - 1)].append(('D', 100 + nt, x))
            g = bar + 1
            for x in setup:
                g = first_free(g); gaps[g].append(('T', x))
            return gaps
        sal = [f"s_add_u32 s{pos}, s{pos}, 1", f"s_cmp_eq_u32 s{pos}, 3\ns_cselect_b32 s{pos}, 0, s{pos}",
               f"s_mov_b32 s{dlt}, {T.stg}\ns_cselect_b32 s{dlt}, {-2*T.stg}, s{dlt}"]
        for s_ in sal:
            g = first_free(0); gaps[g].append(('T', s_))
        assert g < last0
        for k, v in enumerate(vX + vW):
            gaps[last0 + 1 + k].append(('T', f"v_add_u32 v{v}, s{dlt}, v{v}"))
        gaps[bar].append(('B',))
        nxt = [('W', 0, 0, 0), ('W', 0, 0, 1)] + [('X', mt, 0) for mt in range(MT)]
        for nt in range(1, NT): nxt += [('W', nt, 0, 0), ('W', nt, 0, 1)]
        g = bar + 1
        for it in nxt:
            e = g
            if it[0] == 'W': e = max(e, G + it[1] * MT + MT - 1)
            e = first_free(e)
            gaps[e].append(it)
            if it[0] == 'X' or e == g: g = min(e + 1, S - 1)
        gaps[min(first_free(bar + 1), S - 2)].append(('T', f"s_sub_u32 s{cnt}, s{cnt}, 1"))
        return gaps
    st = dict(n=0, done=0, clock=0); when = {}; issued = {}
    def simulate(emit, gaps):
        for s in range(S):
            ks = s // G; nt = (s % G) // MT; mt = s % MT
            needk = [('W', nt, ks, 0), ('W', nt, ks, 1), ('X', mt, ks)]
            tag = max(issued.get(k, 0) for k in needk)
            if tag > st['done']:
                tag = max([tag] + [v for kk, v in issued.items() if when[kk] <= st['clock'] - 9])
                k = min(st['n'] - tag, 15)
                emit(f"s_waitcnt lgkmcnt({k})"); st['done'] = st['n'] - k
            x, w, d = Xf[ks][mt], Wf[nt], acc(mt, nt)
            if T.swap: emit(f"v_mfma_f32_16x16x32_bf16 v[{d}:{d+3}], v[{w}:{w+3}], v[{x}:{x+3}], v[{d}:{d+3}]")
            else:      emit(f"v_mfma_f32_16x16x32_bf16 v[{d}:{d+3}], v[{x}:{x+3}], v[{w}:{w+3}], v[{d}:{d+3}]")
            for it in gaps[s]:
                if it[0] in 'WXD':
                    emit(rdW(*it[1:]) if it[0] == 'W' else rdX(*it[1:]) if it[0] == 'X' else it[2])
                    st['n'] += 1; issued[it[:4]] = st['n']; when[it[:4]] = st['clock']
                elif it[0] == 'T': emit(it[1])
                elif it[0] == 'F':
                    emit("s_waitcnt lgkmcnt(0)"); st['done'] = st['n']
                    emit(f"ds_add_u32 v{R.vcnt}, v{R.vone} offset:{4*C_FREE}"); st['n'] += 1
                else:
                    emit("s_waitcnt lgkmcnt(0)"); st['done'] = st['n']
                    emit("s_barrier")
            st['clock'] += 1
    gl = plan(False)
    simulate(lambda s: None, gl)
    lab = f"L_main_{T.name}"
    A(".p2align 6")
    A.label(lab)
    simulate(A, gl)
    A(f"s_cmp_lg_u32 s{cnt}, 0")
    A(f"s_cbranch_scc1 {lab}")
    simulate(A, plan(True))
    A("s_waitcnt lgkmcnt(0)")
    stamp(A, cfg, 3)
    return R

C_FREE, C_KV, C_QZ, C_RDY, C_EX, C_GO, C_SIG = 0, 1, 2, 3, 4, 12, 13
vPOL, vPA = 249, 250
vSIG, vONE, vCNT, vARR = 251, 252, 253, 254
def sig_regs(A, R):
    A(f"v_mov_b32 v{vSIG}, {OOB}"); A(f"v_writelane_b32 v{vSIG}, 0, 0")
    A(f"v_mov_b32 v{vONE}, 1"); A(f"v_mov_b32 v{vCNT}, {CNT}")
    R.vcnt, R.vone = vCNT, vONE
def poll_regs(A, R):
    t0, t1 = sT, sT + 1
    u = vPOL
    A(f"s_lshr_b32 s{t0}, s{sWave}, 1"); A(f"s_lshl1_add_u32 s{t0}, s{sM2}, s{t0}"); A(f"s_mul_i32 s{t0}, s{t0}, 48")
    A(f"s_add_u32 s{t1}, s{t0}, 47"); A(f"s_min_u32 s{t1}, s{t1}, 2047"); A(f"s_min_u32 s{t0}, s{t0}, 2047")
    A(f"s_mul_i32 s{t0}, s{t0}, 26215"); A(f"s_lshr_b32 s{t0}, s{t0}, 22")
    A(f"s_mul_i32 s{t1}, s{t1}, 26215"); A(f"s_lshr_b32 s{t1}, s{t1}, 22")
    A(f"v_mov_b32 v{u}, s{t0}"); A(f"v_mov_b32 v{vPA}, s{t1}"); A("v_cmp_gt_u32 vcc, 16, v0"); A(f"v_cndmask_b32 v{vPA}, v{vPA}, v{u}, vcc")
    A(f"v_and_b32 v{u}, 15, v0"); A(f"v_min_u32 v{u}, 8, v{u}")
    A(f"v_lshl_add_u32 v{vPA}, v{vPA}, 4, v{u}"); A(f"v_lshlrev_b32 v{vPA}, 9, v{vPA}"); A(f"v_add_u32 v{vPA}, {F_H}, v{vPA}")
    A(f"v_mov_b32 v{vPOL}, 0")

def arrive(A, idx):
    A("s_mov_b64 exec, 1")
    A(f"ds_add_rtn_u32 v{vARR}, v{vCNT}, v{vONE} offset:{4*idx}")
    A("s_mov_b64 exec, -1")
def sig(A, sreg, imm):
    A(f"v_readfirstlane_b32 s{sT+13}, v{vARR}")
    A(f"s_cmp_eq_u32 s{sT+13}, 3"); A(f"s_cselect_b32 s{sT+13}, s{sreg}, {OOB}")
    return f"buffer_store_dword v{vONE}, v{vSIG}, s[{sMI}:{sMI+3}], s{sT+13} offen offset:{imm} sc1"
def sig_now(A, idx, sreg, imm):
    A("s_waitcnt vmcnt(0)")
    arrive(A, idx)
    A("s_waitcnt lgkmcnt(0)")
    A(sig(A, sreg, imm))

def lds_wait(A, cfg, va, vr_, idx, want, first_issued=False, sleep=0):
    top = A.newlabel("lw"); chk = A.newlabel("lwc"); done = A.newlabel("lwd")
    if first_issued:
        A(f"v_readfirstlane_b32 s{sT+13}, v{vr_}")
        A(f"s_cmp_ge_u32 s{sT+13}, {want}"); A(f"s_cbranch_scc1 {done}")
    A(f"s_mov_b32 s{sT+12}, {cfg.spin * 8}")
    A.label(top)
    A(f"ds_read_b32 v{vr_}, v{va} offset:{4*idx}")
    A("s_waitcnt lgkmcnt(0)")
    A(f"v_readfirstlane_b32 s{sT+13}, v{vr_}")
    A(f"s_cmp_ge_u32 s{sT+13}, {want}"); A(f"s_cbranch_scc1 {done}")
    if sleep: A(f"s_sleep {sleep}")
    A(f"s_sub_u32 s{sT+12}, s{sT+12}, 1"); A(f"s_cmp_lg_u32 s{sT+12}, 0"); A(f"s_cbranch_scc1 {top}")
    A.label(done)

def poll4(A, cfg, vq, vaddr, sleep):
    poll(A, cfg, vq, vaddr, sMI, 1, sleep=sleep)

def rowtab_pre(A, R, T, al):
    MT, NT = T.MT, T.NT
    t0 = sT
    va, vb = R.tmp, R.tmp + 1
    A(f"v_and_b32 v{va}, 15, v0"); A(f"s_mul_i32 s{t0}, s{R.wr}, {MT*64}"); A(f"s_add_u32 s{t0}, s{t0}, {T_M}")
    A(f"v_lshl_add_u32 v{va}, v{va}, 2, s{t0}")
    A(f"v_lshrrev_b32 v{vb}, 4, v0"); A(f"s_mul_i32 s{t0}, s{R.wc}, {NT*64}"); A(f"s_add_u32 s{t0}, s{t0}, {T_CS}")
    A(f"v_lshl_add_u32 v{vb}, v{vb}, 4, s{t0}")
    R.MC = [al.get(2, 2) for _ in range(MT)]
    rd = []
    for mt in range(MT):
        rd.append(f"ds_read_b32 v{R.MC[mt]}, v{va} offset:{mt*64}")
        rd.append(f"ds_read_b32 v{R.MC[mt]+1}, v{va} offset:{mt*64 + T_R - T_M}")
    csrd = lambda nt, q: f"ds_read_b128 v[{q}:{q+3}], v{vb} offset:{nt*64}"
    return rd, csrd

def pre_H(A, R):
    al = Alloc(R.top, vPOL)
    sig_regs(A, R); poll_regs(A, R)
    rd, csrd = rowtab_pre(A, R, TH, al)
    R.CS = [al.get(4, 4) for _ in range(6)]
    rd += [csrd(nt, R.CS[nt]) for nt in range(6)]
    t0, t1 = sT, sT + 1
    R.so = so = [sT + 7 + i for i in range(5)]
    A(f"s_lshr_b32 s{t0}, s{sM0}, 4"); A(f"s_mul_i32 s{t1}, s{R.wr}, 5"); A(f"s_add_u32 s{t0}, s{t0}, s{t1}")
    A(f"s_mul_i32 s{t0}, s{t0}, 74"); A(f"s_lshl1_add_u32 s{t1}, s{sG}, s{R.wc}"); A(f"s_add_u32 s{t0}, s{t0}, s{t1}")
    A(f"s_lshl_b32 s{so[0]}, s{t0}, 10")
    for i in range(1, 5): A(f"s_add_u32 s{so[i]}, s{so[i-1]}, {RT_STRIDE}")
    A(f"s_lshl4_add_u32 s{sPend}, s{sMt}, s{sG}"); A(f"s_lshl_b32 s{sPend}, s{sPend}, 9"); A(f"s_add_u32 s{sPend}, s{sPend}, {F_H}")
    A(f"v_lshlrev_b32 v{R.tmp+2}, 4, v0")
    setup = [f"v_mul_f32 v{R.MC[mt]+1}, {f2u(-LOG2E)}, v{R.MC[mt]+1}" for mt in range(5)]
    return rd, [], setup

def epi_H(A, cfg, R):
    T = TH
    MC, CS, so = R.MC, R.CS, R.so
    al = Alloc(R.free0, R.top)
    tt = al.get(8, 4)
    outs = [al.get(4, 4), al.get(4, 4)]
    va = R.tmp + 2
    vm = VM(A); tag = {}
    k = 0
    for b in range(3):
        for mt in range(T.MT):
            a0 = R.acc(mt, 2 * b); o = outs[k & 1]; k += 1
            if cfg.hstamp and b == 0 and mt == 0: stamp(A, cfg, 5)
            if k - 1 == cfg.kpoll: tpoll = vm.issue(f"buffer_load_dword v{vPOL}, v{vPA}, s[{sMI}:{sMI+3}], 0 offen sc1")
            for p in range(4):
                cs = CS[2 * b + (p >> 1)] + 2 * (p & 1)
                A(f"v_pk_fma_f32 {p2(a0+2*p)}, {p2(cs)}, {p2(MC[mt])}, {p2(a0+2*p)} op_sel_hi:[1,0,1]")
            for p in range(4):
                A(f"v_pk_mul_f32 {p2(a0+2*p)}, {p2(a0+2*p)}, {p2(MC[mt])} op_sel:[0,1] op_sel_hi:[1,1]")
            for i in range(8): A(f"v_exp_f32 v{tt+i}, v{a0+i}")
            if b > 0 and mt == cfg.siglag:
                if cfg.hstamp: stamp(A, cfg, 4 + 2 * b)
                vm.wait(tag[b - 1])
                if cfg.hstamp: stamp(A, cfg, 5 + 2 * b)
                arrive(A, C_SIG + b - 1)
            for p in range(4): A(f"v_pk_add_f32 {p2(tt+2*p)}, {p2(tt+2*p)}, 1.0 op_sel_hi:[1,0]")
            for i in range(8): A(f"v_rcp_f32 v{tt+i}, v{tt+i}")
            if b > 0 and mt == cfg.siglag:
                A("s_waitcnt lgkmcnt(0)")
                vm.issue(sig(A, sPend, 128 * (b - 1)))
            for p in range(4): A(f"v_pk_mul_f32 {p2(tt+2*p)}, {p2(tt+2*p)}, {p2(a0+2*p)}")
            for p in range(4): A(f"v_cvt_pk_bf16_f32 v{o+p}, v{tt+2*p}, v{tt+2*p+1}")
            tag[b] = vm.issue(f"buffer_store_dwordx4 v[{o}:{o+3}], v{vSIG if cfg.x_nostore else va}, s[{sACT}:{sACT+3}], s{so[mt]} offen sc1")
        if b < 2: A(f"v_add_u32 v{va}, {18*1024}, v{va}")
    cfg.n_after = vm.n - tpoll if cfg.kpoll < 15 else 0
    stamp(A, cfg, 4)

KVR = 147456
KVR_SZ = 6720
KPAIRS = [(0, 2), (0, 3), (1, 2), (1, 3), (1, 4), (2, 2), (2, 3), (2, 4)]
def kv_scatter_addr(A, KA, wr, wc, tmp):
    t0, t1 = sT, sT + 1
    g4, col, u, hd, he, tr = range(tmp, tmp + 6)
    A(f"v_lshrrev_b32 v{g4}, 4, v0"); A(f"v_lshlrev_b32 v{g4}, 2, v{g4}"); A(f"v_and_b32 v{col}, 15, v0")
    A(f"s_lshl1_add_u32 s{t0}, s{wr}, s{wc}"); A(f"s_mul_i32 s{t0}, s{t0}, 3360"); A(f"s_add_u32 s{t0}, s{t0}, {KVR}")
    A(f"v_mov_b32 v{tr}, {TRASH}")
    for i, (dt, et) in enumerate(KPAIRS):
        ad = KA + i
        A(f"v_add_u32 v{u}, {16*dt}, v{g4}")
        divc(A, hd, u, 20)
        A(f"v_mul_u32_u24 v{ad}, 1600, v{hd}"); A(f"v_lshl_add_u32 v{ad}, v{u}, 2, v{ad}")
        A(f"v_add_u32 v{u}, {16*et - 40}, v{col}")
        A(f"v_mul_u32_u24 v{he}, 20, v{hd}"); A(f"v_sub_u32 v{u}, v{u}, v{he}")
        if et == 2:
            A(f"v_lshl_add_u32 v{he}, v{col}, 1, v{hd}")
            A(f"v_cmp_gt_u32 vcc, 2, v{he}"); A(f"v_cndmask_b32 v{u}, v{u}, 20, vcc")
            A(f"v_cmp_gt_u32 vcc, 21, v{u}")
        else:
            A(f"v_cmp_gt_u32 vcc, 20, v{u}")
        A(f"v_mul_u32_u24 v{u}, 80, v{u}"); A(f"v_add_u32 v{ad}, v{ad}, v{u}")
        A(f"v_add_u32 v{ad}, s{t0}, v{ad}")
        A(f"v_cndmask_b32 v{ad}, v{tr}, v{ad}, vcc")

def pre_K(A, R):
    al = Alloc(R.top, vPOL)
    sig_regs(A, R); poll_regs(A, R)
    R.NM = [al.get(4, 4) for _ in range(5)]; R.RS = [al.get(4, 4) for _ in range(5)]
    R.KC = al.get(4, 4); R.tt = al.get(4, 4); R.yy = al.get(4, 4)
    R.CS = [al.get(2, 2) for _ in range(5)]
    R.eps = al.get(2, 2)
    R.at = al.get(4)
    t0, t1 = sT, sT + 1
    va, vb, vc = R.tmp, R.tmp + 1, R.tmp + 2
    A(f"v_lshrrev_b32 v{va}, 4, v0"); A(f"s_mul_i32 s{t0}, s{R.wr}, 320"); A(f"s_add_u32 s{t0}, s{t0}, {T_M}")
    A(f"v_lshl_add_u32 v{va}, v{va}, 4, s{t0}")
    A(f"v_and_b32 v{vc}, 15, v0"); A(f"s_mul_i32 s{t0}, s{R.wc}, 320"); A(f"s_add_u32 s{t0}, s{t0}, {T_CS}")
    A(f"v_lshl_add_u32 v{vb}, v{vc}, 2, s{t0}")
    R.km = sT + 8
    A(f"v_cmp_gt_u32 s[{R.km}:{R.km+1}], 8, v{vc}")
    A(f"v_mov_b32 v{R.eps}, {f2u(1e-6)}"); A(f"v_mov_b32 v{R.eps+1}, {f2u(LOG2E)}")
    R.vmask = sT + 7
    A(f"s_mul_i32 s{t0}, s{R.wr}, 80"); A(f"s_add_u32 s{t0}, s{t0}, s{sM0}"); A(f"s_cmp_lt_u32 s{t0}, 2000")
    A(f"s_cselect_b32 s{R.vmask}, -1, 0")
    A(f"s_mov_b32 s{sPend}, {OOB}")
    at = R.at
    A(f"s_mul_i32 s{t0}, s{sWave}, {448*4}")
    A(f"v_lshl_add_u32 v{at}, v0, 2, s{t0}"); A(f"v_add_u32 v{at+1}, {KVR}, v{at}")
    A(f"v_mov_b32 v{vc}, {OOB}")
    A(f"v_cmp_gt_u32 vcc, {6720 - 5*256}, v{at}"); A(f"v_cndmask_b32 v{at+2}, v{vc}, v{at}, vcc")
    A(f"v_cmp_gt_u32 vcc, {6720 - 6*256}, v{at}"); A(f"v_cndmask_b32 v{at+3}, v{vc}, v{at}, vcc")
    A(f"s_mul_i32 s{sT+10}, s{sG}, 6720"); A(f"s_add_u32 s{sT+10}, s{sT+10}, {G_KV}")
    A(f"s_lshl3_add_u32 s{t0}, s{sMt}, s{sG}"); A(f"s_lshl_b32 s{t0}, s{t0}, 7"); A(f"s_add_u32 s{sT+11}, s{t0}, {F_KV}")
    rd = [f"ds_read_b32 v{R.CS[nt]}, v{vb} offset:{nt*64}" for nt in range(5)]
    for mt in range(5):
        rd.append(f"ds_read_b128 v[{R.NM[mt]}:{R.NM[mt]+3}], v{va} offset:{mt*64}")
        rd.append(f"ds_read_b128 v[{R.RS[mt]}:{R.RS[mt]+3}], v{va} offset:{mt*64 + T_R - T_M}")
    return rd, [], []

def epi_K(A, cfg, R):
    T = TK
    al = Alloc(R.free0, R.top)
    F = [al.get(10, 2) for _ in range(6)]
    NM, RS, KC, tt, yy, CS, eps, km, vmask, at = R.NM, R.RS, R.KC, R.tt, R.yy, R.CS, R.eps, R.km, R.vmask, R.at
    ones = R.tmp + 2
    A(f"v_mov_b32 v{ones}, 0x3f803f80")
    D = [R.acc0 + 4 * i for i in range(8)]
    def kvm(blk, i):
        dt, et = KPAIRS[i]
        n = 4 if blk < 2 else 2
        a_ = F[dt] + 4 * blk; b_ = F[5 if et == 2 else et] + 4 * blk
        op = "v_mfma_f32_16x16x32_bf16" if blk < 2 else "v_mfma_f32_16x16x16_bf16"
        c_ = "0" if blk == 0 else f"v[{D[i]}:{D[i]+3}]"
        return f"{op} v[{D[i]}:{D[i]+3}], v[{a_}:{a_+n-1}], v[{b_}:{b_+n-1}], {c_}"
    ready = []
    for mt in range(5):
        for p in range(2): A(f"v_pk_mul_f32 {p2(KC+2*p)}, {p2(RS[mt]+2*p)}, {p2(eps)} op_sel:[0,1] op_sel_hi:[1,1]")
        for nt in range(5):
            a0 = R.acc(mt, nt); o = F[nt] + 2 * mt
            for p in range(2):
                A(f"v_pk_fma_f32 {p2(a0+2*p)}, {p2(NM[mt]+2*p)}, {p2(CS[nt])}, {p2(a0+2*p)} op_sel_hi:[1,0,1]")
            if nt <= 2:
                for p in range(2): A(f"v_pk_mul_f32 {p2(tt+2*p)}, {p2(a0+2*p)}, {p2(KC+2*p)}")
                for p in range(2): A(f"v_pk_fma_f32 {p2(yy+2*p)}, {p2(a0+2*p)}, {p2(RS[mt]+2*p)}, {p2(eps)} op_sel_hi:[1,1,0]")
                for i in range(4):
                    if ready and i < 3: A(ready.pop(0))
                    A(f"v_exp_f32 v{tt+i}, v{tt+i} clamp")
                for i in range(4): A(f"v_max_f32 v{yy+i}, v{eps}, v{yy+i}")
                for p in range(2): A(f"v_pk_add_f32 {p2(tt+2*p)}, {p2(tt+2*p)}, {p2(yy+2*p)}")
                for p in range(2): A(f"v_cvt_pk_bf16_f32 v{o+p}, v{tt+2*p}, v{tt+2*p+1}")
                if mt >= 3:
                    for p in range(2): A(f"v_and_b32 v{o+p}, s{vmask}, v{o+p}")
            if nt >= 2:
                for p in range(2): A(f"v_pk_mul_f32 {p2(yy+2*p)}, {p2(a0+2*p)}, {p2(RS[mt]+2*p)}")
                if nt == 2:
                    o = F[5] + 2 * mt
                    for p in range(2): A(f"v_cvt_pk_bf16_f32 v{tt+p}, v{yy+2*p}, v{yy+2*p+1}")
                    for p in range(2): A(f"v_cndmask_b32 v{o+p}, v{tt+p}, v{ones}, s[{km}:{km+1}]")
                else:
                    for p in range(2): A(f"v_cvt_pk_bf16_f32 v{o+p}, v{yy+2*p}, v{yy+2*p+1}")
        if mt in (1, 3): ready += [kvm(mt // 2, i) for i in range(8)]
    assert not ready
    if cfg.hstamp: stamp(A, cfg, 5)
    for i in range(8): A(kvm(2, i))
    for i in range(8): A(f"ds_write_b128 v{R.KA+i}, v[{D[i]}:{D[i]+3}]")
    A("s_waitcnt lgkmcnt(0)")
    if cfg.hstamp: stamp(A, cfg, 7)
    A("s_mov_b64 exec, 1")
    A(f"ds_add_u32 v{vCNT}, v{vONE} offset:{4*C_KV}")
    A("s_mov_b64 exec, -1")
    lds_wait(A, cfg, vCNT, 1, C_KV, 4)
    if cfg.hstamp: stamp(A, cfg, 8)
    x0 = R.acc0 + 44
    for i in range(7):
        A(f"ds_read_b32 v{x0+2*i}, v{at+1} offset:{i*256}")
        A(f"ds_read_b32 v{x0+2*i+1}, v{at+1} offset:{KVR_SZ + i*256}")
    for i in range(7):
        A(f"s_waitcnt lgkmcnt({12 - 2*i})")
        A(f"v_add_f32 v{x0+2*i}, v{x0+2*i}, v{x0+2*i+1}")
        if not cfg.x_noatom: A(f"buffer_atomic_add_f32 v{x0+2*i}, v{at if i < 5 else at + i - 3}, s[{sMI}:{sMI+3}], s{sT+10} offen offset:{i*256}")
    stamp(A, cfg, 4)
    sig_now(A, C_SIG + 1, sT + 11, 0)
    if cfg.hstamp: stamp(A, cfg, 9)

QF = 53248
def pre_Q(A, R):
    al = Alloc(R.top, vSIG)
    sig_regs(A, R)
    rd, csrd = rowtab_pre(A, R, TQ, al)
    R.eps = al.get(2, 2)
    A(f"v_mov_b32 v{R.eps}, {f2u(1e-6)}"); A(f"v_mov_b32 v{R.eps+1}, {f2u(LOG2E)}")
    R.CS = R.Wf
    return rd, [(nt, csrd(nt, R.Wf[nt])) for nt in range(10)], []

def epi_Q(A, cfg, R):
    T = TQ
    MC, CS, eps = R.MC, R.CS, R.eps
    tt = R.Xf[0][0]
    P = lambda mt, b: R.acc(mt, 2 * b)
    nel = R.Xf[0][2]; A(f"v_mov_b32 v{nel}, {f2u(-1e-6 * LOG2E)}")
    for mt in range(4):
        for b in range(5):
            a0 = R.acc(mt, 2 * b)
            for p in range(4):
                cs = CS[2 * b + (p >> 1)] + 2 * (p & 1)
                A(f"v_pk_fma_f32 {p2(a0+2*p)}, {p2(cs)}, {p2(MC[mt])}, {p2(a0+2*p)} op_sel_hi:[1,0,1]")
            for p in range(4):
                A(f"v_pk_fma_f32 {p2(a0+2*p)}, {p2(a0+2*p)}, {p2(MC[mt])}, {p2(eps)} op_sel:[0,1,0] op_sel_hi:[1,1,0]")
            for p in range(4):
                A(f"v_pk_fma_f32 {p2(tt+2*p)}, {p2(a0+2*p)}, {p2(eps)}, {p2(nel)} op_sel:[0,1,0] op_sel_hi:[1,1,0]")
            for i in range(8): A(f"v_exp_f32 v{tt+i}, v{tt+i} clamp")
            for i in range(8): A(f"v_max_f32 v{a0+i}, v{eps}, v{a0+i}")
            for p in range(4): A(f"v_pk_add_f32 {p2(tt+2*p)}, {p2(tt+2*p)}, {p2(a0+2*p)}")
            for p in range(4): A(f"v_cvt_pk_bf16_f32 v{a0+p}, v{tt+2*p}, v{tt+2*p+1}")
    al = Alloc(R.free0, vSIG)
    eps1 = al.get(); sel = al.get()
    A(f"v_mov_b32 v{eps1}, {f2u(1e-6)}")
    freeq = [R.acc(mt, 2 * b + 1) for mt in range(4) for b in range(5)]
    KF = [[al.get(4, 4) for _ in range(4)] for _ in range(2)]
    outs = [al.get(4, 4), al.get(4, 4)]
    extra = [al.get(4, 4) for _ in range(9)] + [4]
    D = [[freeq[2 * mt], freeq[2 * mt + 1]] for mt in range(4)]
    pool = freeq[8:] + extra[:4]
    N = [[[pool[8 * q + 2 * mt], pool[8 * q + 2 * mt + 1]] for mt in range(4)] for q in range(2)]
    Z = extra[4:10]
    A(f"v_lshlrev_b32 v3, 4, v0"); A(f"v_add_u32 v1, {QF}, v3")
    gm = [sT + 4, sT + 6, sT + 8]
    A("v_lshrrev_b32 v2, 4, v0")
    for i in range(3): A(f"v_cmp_lt_u32 s[{gm[i]}:{gm[i]+1}], {i}, v2")
    t0, t1 = sT, sT + 1
    A(f"s_lshr_b32 s{t0}, s{sM0}, 4"); A(f"s_lshl2_add_u32 s{t0}, s{sWave}, s{t0}")
    A(f"s_mul_i32 s{t0}, s{t0}, 74"); A(f"s_add_u32 s{t0}, s{t0}, s{sG}")
    A(f"s_add_u32 s{t0}, s{t0}, 54")
    so = [sT + 2, sT + 3, sT + 10, sT + 11]
    A(f"s_lshl_b32 s{so[0]}, s{t0}, 10")
    for i in range(1, 4): A(f"s_add_u32 s{so[i]}, s{so[i-1]}, {RT_STRIDE}")
    A(f"s_lshl2_add_u32 s{t0}, s{sMt}, s{sG}"); A(f"s_lshl_b32 s{t0}, s{t0}, 10"); A(f"s_add_u32 s{t0}, s{t0}, {F_O}")
    stamp(A, cfg, 4)
    A("s_barrier")
    stamp(A, cfg, 5)
    for i in range(3): A(f"ds_read_b128 v[{Z[i]}:{Z[i]+3}], v1 offset:{(20+i)*1024}")
    def blocks(j):
        lo = (16 * j) // 20 * 20; hi = ((16 * j + 15) // 20) * 20 + 19
        return list(range(lo // 32, hi // 32 + 1))
    def rdK(bp):
        for jj in range(2):
            j = 2 * bp + jj
            for b in blocks(j):
                q = KF[bp & 1][2 * jj + (b & 1)]
                A(f"ds_read_b128 v[{q}:{q+3}], v1 offset:{(2*j + (b&1))*1024}")
    rdK(0)
    for i in range(3, 6): A(f"ds_read_b128 v[{Z[i]}:{Z[i]+3}], v1 offset:{(20+i)*1024}")
    rdK(1)
    def denm(u):
        r = []
        for k in range(3):
            for mt in range(4):
                b = 2 * u + k; z = Z[3 * u + k]; d = D[mt][u]; p = P(mt, b)
                c_ = "0" if k == 0 else f"v[{d}:{d+3}]"
                r.append(f"v_mfma_f32_16x16x32_bf16 v[{d}:{d+3}], v[{z}:{z+3}], v[{p}:{p+3}], {c_}")
        return r
    def denv(u):
        r = []
        for mt in range(4):
            r += [f"v_add_f32 v{D[mt][u]+i}, v{eps1}, v{D[mt][u]+i}" for i in range(4)]
            r += [f"v_rcp_f32 v{D[mt][u]+i}, v{D[mt][u]+i}" for i in range(4)]
        return r
    for i, m in enumerate(denm(0)):
        if i % 4 == 0: A(f"s_waitcnt lgkmcnt({12 - i // 4})")
        A(m)
    def num(bp):
        r = []
        for k in range(2):
            for mt in range(4):
                for jj in range(2):
                    bl = blocks(2 * bp + jj)
                    if k >= len(bl): continue
                    b = bl[k]; q = KF[bp & 1][2 * jj + (b & 1)]; d = N[bp & 1][mt][jj]; p = P(mt, b)
                    c_ = "0" if k == 0 else f"v[{d}:{d+3}]"
                    r.append(f"v_mfma_f32_16x16x32_bf16 v[{d}:{d+3}], v[{q}:{q+3}], v[{p}:{p+3}], {c_}")
        return r
    vm = VM(A); tag = {}
    def put(x):
        if isinstance(x, str): A(x)
        elif x[0] == 'st': tag[x[1]] = vm.issue(x[2])
        elif x[0] == 'arr':
            vm.wait(tag[x[1]]); arrive(A, C_EX + x[1])
        else:
            A("s_waitcnt lgkmcnt(0)"); vm.issue(sig(A, t0, 128 * x[1]))
    def weave(mf, va):
        step = max(1, len(va) // max(1, len(mf)))
        i = 0
        for m in mf:
            A(m)
            for x in va[i:i + step]: put(x)
            i += step
        for x in va[i:]: put(x)
    A("s_waitcnt lgkmcnt(7)")
    if cfg.hstamp: stamp(A, cfg, 7)
    n0 = num(0)
    for m in n0[:4]: A(m)
    weave(n0[4:], denv(0))
    if cfg.hstamp: stamp(A, cfg, 8)
    k = 0
    for bp in range(5):
        va = []
        for mt in range(4):
            o = outs[k & 1]; k += 1
            for jj in range(2):
                j = 2 * bp + jj; h0 = (16 * j) // 20; jm = j % 5
                rd = lambda h: D[mt][h >> 2] + (h & 3)
                if jm in (1, 2, 3):
                    va.append(f"v_cndmask_b32 v{sel}, v{rd(h0)}, v{rd(h0+1)}, s[{gm[jm-1]}:{gm[jm-1]+1}]")
                    sv = sel
                else: sv = rd(h0)
                n = N[bp & 1][mt][jj]
                for r in range(4): va.append(f"v_mul_f32 v{n+r}, v{sv}, v{n+r}")
                for p in range(2): va.append(f"v_cvt_pk_bf16_f32 v{o+2*jj+p}, v{n+2*p}, v{n+2*p+1}")
            va.append(('st', bp, f"buffer_store_dwordx4 v[{o}:{o+3}], v3, s[{sACT}:{sACT+3}], s{so[mt]} offen sc1"))
            q_, r_ = divmod(4 * bp + mt + 1 - cfg.olag, 4)
            if r_ == 0 and q_ >= 1 and 4 * bp + mt < 19: va.append(('arr', q_ - 1)); signalled = q_
            if r_ == 1 and q_ >= 1: va.append(('sig', q_ - 1))
        if bp < 4: va.append("v_add_u32 v3, 4096, v3")
        if bp < 4:
            A("s_waitcnt lgkmcnt(0)")
            mf = num(bp + 1)
            if bp == 1:
                mf = denm(1) + mf; va = va + denv(1)
            if bp < 3: rdK(bp + 2)
            weave(mf, va)
            if cfg.hstamp and bp in (0, 2): stamp(A, cfg, 9 + bp // 2)
        else:
            for x in va: put(x)
    stamp(A, cfg, 6)
    for bp in range(signalled, 5): put(('arr', bp)); put(('sig', bp))

LV = dict(a=1, b=2, c=3, d=4, e=5, f=6, A=8, B=16)
def loader_head(A, cfg):
    lw, t0, t1, nA = sT, sT + 1, sT + 2, sT + 4
    a, b, c = LV['a'], LV['b'], LV['c']; vA = LV['A']
    la = sT + 5
    if cfg.lprio: A(f"s_setprio {cfg.lprio}")
    A(f"s_sub_u32 s{lw}, s{sWave}, 4")
    A(f"s_mul_i32 s{t0}, s{lw}, s{nA}")
    A(f"v_lshrrev_b32 v{a}, 3, v0"); A(f"v_and_b32 v{b}, 7, v0")
    A(f"s_lshl_b32 s{la}, s{t0}, 10")
    A(f"s_lshl3_add_u32 s{t1}, s{t0}, s{sM0}"); A(f"s_mul_i32 s{t1}, s{t1}, 1280")
    A(f"s_and_b32 s{t0}, s{t0}, 1"); A(f"s_lshl_b32 s{t0}, s{t0}, 2")
    A(f"v_lshrrev_b32 v{c}, 4, v0"); A(f"v_xor_b32 v{c}, v{c}, v{b}"); A(f"v_xor_b32 v{c}, s{t0}, v{c}")
    A(f"v_mul_u32_u24 v{vA}, 1280, v{a}"); A(f"v_lshl_add_u32 v{vA}, v{c}, 4, v{vA}"); A(f"v_add_u32 v{vA}, s{t1}, v{vA}")
    A(f"v_xor_b32 v{vA+1}, 64, v{vA}"); A(f"v_add_u32 v{vA+1}, 10240, v{vA+1}")
    for i in range(2, 5): A(f"v_add_u32 v{vA+i}, 20480, v{vA+i-2}")
    A(f"s_mov_b32 s{sX+2}, {2048*1280}"); A(f"s_mov_b32 s{sX+3}, 0x20000")
    A(f"s_mov_b32 m0, s{la}")
    A("s_waitcnt lgkmcnt(0)")
    A(f"s_mov_b32 s{sX}, s4"); A(f"s_mov_b32 s{sX+1}, s5")
    for i in range(5):
        if i: A(f"s_add_u32 m0, s{la}, {i*1024}")
        A(f"buffer_load_dwordx4 v{vA+i}, s[{sX}:{sX+3}], 0 offen lds")

def b2_rows(t):
    if t < 27: return (192 * (t % 9) + 32 * (t // 9)) * 1280, sW2
    u = t - 27
    return (320 * (u & 1) + 32 * (u >> 1)) * 1280, sWO

def b2_slot(t):
    return ((t + 6) % B2_SLOTS) * B2_SZ

RB0 = 100
vB2 = 92
sOwn = 3
class Pref:
    def __init__(self, A, vm, lb, cfg):
        self.A, self.vm, self.lb, self.cfg = A, vm, lb, cfg
        self.last_dma = 0
        self.thr = None
        self.own_done = set(); self.oth_done = set()
        self.tag = {}; self.hook = None
    def one(self, t):
        A = self.A; off, srdb = b2_rows(t)
        A(f"s_mov_b32 s{sT+2}, {off}")
        if self.thr is not None: A(f"s_waitcnt vmcnt({self.thr})")
        for j in range(2):
            v = vB2 + j + (2 if srdb == sWO else 0)
            if t < B2_SLOTS:
                A(f"s_add_u32 m0, s{self.lb}, {b2_slot(t) + j*1024}")
                A(f"buffer_load_dwordx4 v{v}, s[{srdb}:{srdb+3}], s{sT+2} offen lds")
            else:
                q = RB0 + (t - B2_SLOTS) * 8 + 4 * j
                A(f"buffer_load_dwordx4 v[{q}:{q+3}], v{v}, s[{srdb}:{srdb+3}], s{sT+2} offen")
    def run(self, ts, own):
        A = self.A
        done = self.own_done if own else self.oth_done
        ts = [t for t in ts if t not in done and t < 37]
        done.update(ts)
        if not self.cfg.owner:
            if own: return
            for t in ts:
                self.one(t); self.vm.n += 2; self.tag[t] = self.vm.n
                if self.hook: self.hook(t)
        else:
            for t in ts:
                skip = A.newlabel("pf")
                A(f"s_cmp_{'lg' if own else 'eq'}_u32 s{sOwn}, {t % 5}"); A(f"s_cbranch_scc1 {skip}")
                self.one(t)
                A.label(skip)
            self.vm.n += 2 * min(sum(((t % 5 == j) == own) for t in ts) for j in range(5))
        if any(t < B2_SLOTS for t in ts): self.last_dma = self.vm.n

def loader1(A, cfg, T):
    vm = VM(A); vm.n = 6
    lw, t0, t1, t2 = sT, sT + 1, sT + 2, sT + 3
    a, b, c, d, e, f = [LV[k] for k in "abcdef"]
    vA = [LV['A'] + i for i in range(T.nA)]; vB = [LV['B'] + i for i in range(T.nB)]
    al = Alloc(22, vB2)
    la, lb, ka, kb = sT + 5, sT + 4, sT + 6, sT + 7
    if T is TQ:
        for i in range(5, 8):
            A(f"v_add_u32 v{vA[i]}, 20480, v{vA[i-2]}")
            A(f"s_add_u32 m0, s{la}, {i*1024}")
            vm.issue(f"buffer_load_dwordx4 v{vA[i]}, s[{sX}:{sX+3}], 0 offen lds")
    stride = 3456 if T is TH else 3840
    if T is TH: srd(A, sW, "s12", "s13", 640 * 3456)
    else: srd(A, sW, "s6", "s7", 640 * 3840)
    A(f"s_mul_i32 s{lb}, s{lw}, {T.nB*1024}"); A(f"s_add_u32 s{lb}, s{lb}, {T.a_bytes}")
    tags = {}
    if T.panel:
        A(f"v_and_b32 v{d}, 2, v{a}"); A(f"v_xor_b32 v{d}, v{d}, v{b}")
        A(f"v_mul_u32_u24 v{c}, {stride}, v{a}"); A(f"v_lshl_add_u32 v{c}, v{d}, 4, v{c}"); A(f"v_xor_b32 v{d}, 64, v{c}")
        A(f"s_mul_i32 s{t2}, s{sG}, 384")
        A(f"s_cmp_ge_u32 s{sMt}, 13"); A(f"s_cselect_b32 s{t2}, {OOB}, s{t2}")
    else:
        A(f"s_mul_i32 s{t1}, s{sG}, {160 if T is TK else 320}")
        A(f"s_mul_i32 s{t0}, s{lw}, {16*stride}"); A(f"s_add_u32 s{t1}, s{t1}, s{t0}")
        if T is TK: A(f"s_add_u32 s{t1}, s{t1}, 1280")
    for i in range(T.nB):
        if T.panel:
            A(f"s_mul_i32 s{t0}, s{lw}, 6"); A(f"s_add_u32 s{t0}, s{t0}, {i}")
            A(f"s_lshr_b32 s{t1}, s{t0}, 3"); A(f"s_and_b32 s{t0}, s{t0}, 7")
            A(f"s_mul_i32 s{t0}, s{t0}, {8*stride}"); A(f"s_lshl_b32 s{t1}, s{t1}, 7")
            A(f"s_add_u32 s{t0}, s{t0}, s{t1}"); A(f"s_add_u32 s{t0}, s{t0}, s{t2}")
            A(f"v_add_u32 v{vB[i]}, s{t0}, v{d if i & 1 else c}")
        else:
            A(f"v_add_u32 v{c}, {64*i}, v0")
            divc(A, d, c, 20)
            A(f"v_mul_u32_u24 v{e}, 20, v{d}"); A(f"v_sub_u32 v{c}, v{c}, v{e}")
            A(f"v_lshrrev_b32 v{e}, 2, v{d}"); A(f"v_and_b32 v{e}, 2, v{e}"); A(f"v_xor_b32 v{c}, v{c}, v{e}")
            A(f"v_mul_u32_u24 v{d}, {stride}, v{d}"); A(f"v_lshl_add_u32 v{d}, v{c}, 4, v{d}")
            if T is TK:
                divc(A, e, c, 5)
                A(f"v_and_b32 v{f}, 1, v{e}"); A(f"v_mul_u32_u24 v{f}, 1240, v{f}")
                A(f"v_mul_u32_u24 v{e}, 40, v{e}"); A(f"v_sub_u32 v{f}, v{f}, v{e}")
                A(f"v_add3_u32 v{vB[i]}, v{f}, v{d}, s{t1}")
            else:
                A(f"v_add_u32 v{vB[i]}, s{t1}, v{d}")
        A(f"s_add_u32 m0, s{lb}, {i*1024}")
        tags[0] = vm.issue(f"buffer_load_dwordx4 v{vB[i]}, s[{sW}:{sW+3}], 0 offen lds")
    A(f"s_mov_b32 s{ka}, 128"); A(f"s_mov_b32 s{kb}, {64*stride}")
    NP = T.nA + T.nB
    order = []
    for i in range(max(T.nA, T.nB)):
        if i < T.nB: order.append(('B', i))
        if i < T.nA: order.append(('A', i))
    cur = [NP]
    def issue_upto(n):
        n = min(n, 10 * NP)
        while cur[0] < n:
            t, k = divmod(cur[0], NP); kind, i = order[k]
            base = (t % 3) * T.stg
            if kind == 'B':
                A(f"s_add_u32 m0, s{lb}, {base + i*1024}")
                tags[t] = vm.issue(f"buffer_load_dwordx4 v{vB[i]}, s[{sW}:{sW+3}], s{kb} offen lds")
            else:
                A(f"s_add_u32 m0, s{la}, {base + i*1024}")
                tags[t] = vm.issue(f"buffer_load_dwordx4 v{vA[i]}, s[{sX}:{sX+3}], s{ka} offen lds")
            cur[0] += 1
            if k == NP - 1:
                A(f"s_add_u32 s{ka}, s{ka}, 128"); A(f"s_add_u32 s{kb}, s{kb}, {64*stride}")
    diag_init(A, cfg)
    stamp(A, cfg, 8)
    CW = al.get(20, 4); CA = al.get(10, 2)
    if cfg.ccol: decode_cols(A, t0)
    else: tcol = col_issue(A, vm.issue, lw, a, b, c, CW)
    stamp(A, cfg, 9)
    issue_upto(NP + cfg.look[0])
    stamp(A, cfg, 10)
    def side_setup():
        srd_mi(A); srd(A, sDBG, "s18", "s19", 256)
        srd(A, sW2, "s14", "s15", 1728 * 1280); srd(A, sWO, "s8", "s9", 640 * 1280)
        decode_early(A, t0)
        if T is not TQ: decode_p2(A, cfg, t0, t1)
    vGo, vGoD, vL, vRow, vCol, vBig, vPub, vPl = [al.get() for _ in range(8)]
    P = al.get(6, 2)
    cs3 = [sT + 8, sT + 9, sT + 10]
    def side_addr():
        A(f"v_min_u32 v{vGo}, 11, v0"); A(f"v_lshl_add_u32 v{vGo}, v{vGo}, 4, 64")
        A(f"s_lshl_b32 s{t0}, s{lw}, 6"); A(f"v_add_u32 v{vL}, s{t0}, v0")
        A(f"v_mov_b32 v{vBig}, {OOB}")
        A(f"s_mul_i32 s{t0}, s{sEK}, {3648*4}"); A(f"s_lshl_b32 s{t1}, s{sEL}, 8"); A(f"s_add_u32 s{t0}, s{t0}, s{t1}")
        A(f"s_add_u32 s{t0}, s{t0}, {G_CS}"); A(f"s_cmp_lt_u32 s{sEK}, 4"); A(f"s_cselect_b32 s{t0}, s{t0}, {OOB}")
        A(f"v_lshl_add_u32 v{vPub}, v0, 2, s{t0}")
        A(f"v_lshlrev_b32 v{c}, 13, v{a}")
        A(f"v_add_u32 v{d}, s{sER}, v{b}"); A(f"v_lshl_add_u32 v{c}, v{d}, 2, v{c}")
        A(f"v_cmp_gt_u32 vcc, 64, v{vL}"); A(f"v_cndmask_b32 v{vPub}, v{c}, v{vPub}, vcc")
        A(f"v_cmp_gt_u32 vcc, 80, v{vL}"); A(f"v_cndmask_b32 v{vPub}, v{vBig}, v{vPub}, vcc")
        A(f"v_lshlrev_b32 v{vPl}, 2, v0"); A(f"v_add_u32 v{vPl}, {E_CS}, v{vPl}")
    def tab_addr():
        A(f"v_add_u32 v{c}, s{sM0}, v{vL}"); A(f"v_lshlrev_b32 v{vRow}, 2, v{c}")
        A(f"v_cmp_gt_u32 vcc, 2048, v{c}"); A(f"v_cndmask_b32 v{vRow}, v{vBig}, v{vRow}, vcc")
        A(f"v_cmp_gt_u32 vcc, {T.BM}, v{vL}"); A(f"v_cndmask_b32 v{vRow}, v{vBig}, v{vRow}, vcc")
        if T is TH:
            A(f"s_mul_i32 s{t0}, s{sG}, 192"); A(f"s_add_u32 s{t0}, s{t0}, 1920"); A(f"v_add_u32 v{c}, s{t0}, v{vL}"); BN = 192
        elif T is TQ:
            A(f"s_mul_i32 s{t0}, s{sG}, 160"); A(f"v_add_u32 v{c}, s{t0}, v{vL}"); BN = 160
        else:
            divc(A, d, vL, 40)
            A(f"v_and_b32 v{e}, 1, v{d}"); A(f"v_mul_u32_u24 v{e}, 620, v{e}"); A(f"v_mul_u32_u24 v{d}, 20, v{d}")
            A(f"v_sub_u32 v{e}, v{e}, v{d}")
            A(f"s_mul_i32 s{t0}, s{sG}, 80"); A(f"s_add_u32 s{t0}, s{t0}, 640"); A(f"v_add3_u32 v{c}, v{e}, v{vL}, s{t0}"); BN = 160
        A(f"v_lshlrev_b32 v{vCol}, 2, v{c}"); A(f"v_add_u32 v{vCol}, {G_CS}, v{vCol}")
        A(f"v_cmp_gt_u32 vcc, {BN}, v{vL}"); A(f"v_cndmask_b32 v{vCol}, v{vBig}, v{vCol}, vcc")
        for i in range(3): A(f"s_mov_b32 s{cs3[i]}, {(i+1)*3648*4}")
        A(f"s_mov_b32 s{sT+11}, {G_R}")
    def colsum(part):
        if cfg.ccol: return
        vm.wait(tcol)
        col_sum(A, part, lw, b, c, CW, CA)
        if part: A("s_waitcnt lgkmcnt(0)")
    def warm():
        A(f"s_lshl2_add_u32 s{t0}, s2, s{lw}")
        A(f"s_cmp_lt_u32 s{t0}, 720")
        A(f"s_cselect_b32 s{sE}, s14, s8"); A(f"s_cselect_b32 s{sE+1}, s15, s9")
        A(f"s_cselect_b32 s{sE+2}, s{sW2+2}, s{sWO+2}"); A(f"s_cselect_b32 s{t1}, 0, 720")
        A(f"s_sub_u32 s{t0}, s{t0}, s{t1}"); A(f"s_mul_i32 s{t0}, s{t0}, {24*128}")
        A(f"v_min_u32 v{c}, 23, v0"); A(f"v_lshlrev_b32 v{c}, 7, v{c}")
        vm.issue(f"buffer_load_dword v255, v{c}, s[{sE}:{sE+3}], s{t0} offen")
    def swarm(k):
        if k == 0:
            A(f"s_lshl2_add_u32 s{t0}, s2, s{lw}")
            A(f"s_cmp_lt_u32 s{t0}, 720")
            A(f"s_cselect_b32 s{sE}, s14, s8"); A(f"s_cselect_b32 s{sE+1}, s15, s9")
            A(f"s_cselect_b32 s{t1}, 0, 720"); A(f"s_cselect_b32 s{t2}, -1, {(6400-24)*128}")
            A(f"s_sub_u32 s{t0}, s{t0}, s{t1}"); A(f"s_mul_i32 s{t0}, s{t0}, {24*128}"); A(f"s_min_u32 s{t0}, s{t0}, s{t2}")
            A(f"s_add_u32 s{sE}, s{sE}, s{t0}"); A(f"s_addc_u32 s{sE+1}, s{sE+1}, 0")
        for i in range(6): A(f"s_load_dwordx2 s[22:23], s[{sE}:{sE+1}], {(6*k + i)*128 + 60}")
    def tab_loads(isue):
        isue(f"buffer_load_dword v{P}, v{vRow}, s[{sMI}:{sMI+3}], 0 offen sc1")
        isue(f"buffer_load_dword v{P+1}, v{vRow}, s[{sMI}:{sMI+3}], s{sT+11} offen sc1")
        isue(f"buffer_load_dword v{P+2}, v{vCol}, s[{sMI}:{sMI+3}], 0 offen sc1")
        for i in range(3): r = isue(f"buffer_load_dword v{P+3+i}, v{vCol}, s[{sMI}:{sMI+3}], s{cs3[i]} offen sc1")
        return r
    lb2 = sT + 12
    def b2_addr():
        A(f"v_and_b32 v{c}, 6, v{a}"); A(f"v_xor_b32 v{c}, v{c}, v{b}")
        A(f"v_mul_u32_u24 v{d}, 1280, v{a}"); A(f"v_lshl_add_u32 v{c}, v{c}, 4, v{d}")
        A(f"s_and_b32 s{t0}, s{lw}, 1"); A(f"s_mul_i32 s{t0}, s{t0}, {16*1280}")
        A(f"s_lshl_b32 s{t1}, s{sN2}, 7"); A(f"s_add_u32 s{t0}, s{t0}, s{t1}")
        A(f"s_cmp_eq_u32 s{sP2}, 0"); A(f"s_cselect_b32 s{t0}, {OOB}, s{t0}")
        A(f"s_lshr_b32 s{t1}, s{lw}, 1"); A(f"s_mul_i32 s{t2}, s{t1}, {96*1280}"); A(f"s_add_u32 s{t2}, s{t2}, s{t0}")
        A(f"v_add_u32 v{vB2}, s{t2}, v{c}"); A(f"v_add_u32 v{vB2+1}, 10240, v{vB2}")
        A(f"s_mul_i32 s{t2}, s{t1}, {160*1280}"); A(f"s_add_u32 s{t2}, s{t2}, s{t0}")
        A(f"v_add_u32 v{vB2+2}, s{t2}, v{c}"); A(f"v_add_u32 v{vB2+3}, 10240, v{vB2+2}")
        A(f"s_lshl_b32 s{lb2}, s{lw}, 11")
        A(f"s_mul_i32 s{t0}, s{sM2}, 13108"); A(f"s_lshr_b32 s{t0}, s{t0}, 16"); A(f"s_mul_i32 s{t0}, s{t0}, 5"); A(f"s_sub_u32 s{sOwn}, s{sM2}, s{t0}")
    pf = Pref(A, vm, lb2, cfg)
    sched = cfg.pfH if T is TH else cfg.pfK
    side_setup(); side_addr(); tab_addr()
    if T is not TQ: b2_addr()
    tP = cfg.tpub; kown = 0
    if T is TQ: QR = loaderQ_addr(A, cfg, vL)
    for t in range(10):
        vm.wait(tags[t])
        if t == 0: stamp(A, cfg, 1)
        if t == 0 and cfg.lprio != cfg.lprio2: A(f"s_setprio {cfg.lprio2}")
        A("s_barrier")
        if cfg.bstamp: stamp(A, cfg, 1 + t, late=True)
        if t == tP - 1: tgo = vm.issue(f"buffer_load_dword v{vGoD}, v{vGo}, s[{sDBG}:{sDBG+3}], 0 offen sc1")
        if t == cfg.ttab: ttab = tab_loads(vm.issue)
        if t < 9: issue_upto((t + 2) * NP + min(NP, cfg.look[min(t + 1, len(cfg.look) - 1)]))
        if t == cfg.tcol: colsum(0)
        if t == cfg.tcol + 1: colsum(1)
        if t == tP:
            vm.wait(tgo)
            poll(A, cfg, vGoD, vGo, sDBG, 1, first_issued=True)
            for i in range(4): A(f"ds_read_b32 v{P+i}, v{vPl} offset:{i*256}")
            A(f"ds_read_b32 v{P+4}, v{vPl} offset:1024")
            A("s_waitcnt lgkmcnt(0)")
            A(f"v_add_f32 v{P}, v{P}, v{P+1}"); A(f"v_add_f32 v{P+2}, v{P+2}, v{P+3}"); A(f"v_add_f32 v{P}, v{P}, v{P+2}")
            A(f"v_cmp_gt_u32 vcc, 64, v{vL}"); A(f"v_cndmask_b32 v{P}, v{P+4}, v{P}, vcc")
            vm.issue(f"buffer_store_dword v{P}, v{vPub}, s[{sMI}:{sMI+3}], 0 offen sc1")
        if t == cfg.twarm: warm()
        if t in cfg.tswarm: swarm(cfg.tswarm.index(t))
        if cfg.l2warm and t in (cfg.l2warm, cfg.l2warm + 1):
            j0 = 4 * (t - cfg.l2warm)
            A(f"s_lshr_b32 s{t0}, s2, 3"); A(f"s_mul_i32 s{t0}, s{t0}, 6"); A(f"s_add_u32 s{t0}, s{t0}, s{lw}")
            if j0:
                A(f"s_add_u32 s{t0}, s{t0}, 4"); A(f"s_cmp_lt_u32 s{lw}, 2"); A(f"s_cselect_b32 s{t0}, s{t0}, 200")
            A(f"s_cmp_lt_u32 s{t0}, 135")
            A(f"s_cselect_b32 s{sE}, s14, s8"); A(f"s_cselect_b32 s{sE+1}, s15, s9")
            A(f"s_cselect_b32 s{sE+2}, s{sW2+2}, s{sWO+2}"); A(f"s_cselect_b32 s{t1}, 0, 135")
            A(f"s_sub_u32 s{t0}, s{t0}, s{t1}"); A(f"s_lshl_b32 s{t0}, s{t0}, 6")
            A(f"v_add_u32 v{c}, s{t0}, v0")
            A(f"v_mul_u32_u24 v{d}, 13108, v{c}"); A(f"v_lshrrev_b32 v{d}, 16, v{d}")
            A(f"v_mul_u32_u24 v{d}, 640, v{d}"); A(f"v_lshl_add_u32 v{c}, v{c}, 7, v{d}")
            A(f"s_and_b32 s{t1}, s2, 1"); A(f"s_mul_i32 s{t1}, s{t1}, 640")
            vm.issue(f"buffer_load_dword v255, v{c}, s[{sE}:{sE+3}], s{t1} offen")
        if T is not TQ and t < 9:
            kown += sched[t]
            pf.run(range(18, 18 + kown), False)
        if t == cfg.ttab + 1:
            vm.wait(ttab)
            top, chk, done = A.newlabel("tab"), A.newlabel("tabc"), A.newlabel("tabd")
            A(f"s_mov_b32 s{sT+13}, {cfg.spin}")
            A(f"s_branch {chk}")
            A.label(top)
            tab_loads(A)
            A("s_waitcnt vmcnt(0)")
            A.label(chk)
            A(f"v_max_u32 v{c}, v{P}, v{P+1}"); A(f"v_max3_u32 v{c}, v{c}, v{P+2}, v{P+3}"); A(f"v_max3_u32 v{c}, v{c}, v{P+4}, v{P+5}")
            A(f"v_cmp_eq_u32 vcc, -1, v{c}")
            A("s_nop 1"); A("s_cmp_eq_u64 vcc, 0"); A(f"s_cbranch_scc1 {done}")
            A("s_sleep 4")
            A(f"s_sub_u32 s{sT+13}, s{sT+13}, 1"); A(f"s_cmp_lg_u32 s{sT+13}, 0"); A(f"s_cbranch_scc1 {top}")
            A.label(done)
            A(f"v_add_f32 v{P+2}, v{P+2}, v{P+3}"); A(f"v_add_f32 v{P+4}, v{P+4}, v{P+5}"); A(f"v_add_f32 v{P+2}, v{P+2}, v{P+4}")
            A(f"v_lshlrev_b32 v{c}, 2, v{vL}"); A(f"v_add_u32 v{c}, {T_M}, v{c}")
            A(f"ds_write_b32 v{c}, v{P}"); A(f"ds_write_b32 v{c}, v{P+1} offset:{T_R - T_M}")
            A(f"v_min_u32 v{d}, 192, v{vL}"); A(f"v_lshlrev_b32 v{d}, 2, v{d}"); A(f"v_add_u32 v{d}, {T_CS}, v{d}")
            A(f"ds_write_b32 v{d}, v{P+2}")
            A("s_waitcnt lgkmcnt(0)")
        if t in (4, 9): stamp(A, cfg, 2 if t == 4 else 3)
    if T is TQ: return QR
    A(f"s_cmp_eq_u32 s{sP2}, 0"); A("s_cbranch_scc1 L_fin")
    pf.thr = cfg.thr
    loader2(A, cfg, pf, T)

def loaderQ_addr(A, cfg, vL):
    t0, t1 = sT + 1, sT + 2
    AD = [100 + i for i in range(4)]; GA = [104 + i for i in range(4)]
    it, h, rem, e, dq, d, u, w, zr, cp = range(108, 118)
    big = 120; A(f"v_mov_b32 v{big}, {OOB}")
    trash = 121; A(f"v_mov_b32 v{trash}, {28*1024}")
    for i in range(4):
        A(f"v_add_u32 v{it}, {256*i}, v{vL}")
        if i == 3:
            A(f"v_subrev_u32 v{u}, 800, v{it}")
            divc(A, cp, u, 40); A(f"v_mul_u32_u24 v{w}, 40, v{cp}"); A(f"v_sub_u32 v{u}, v{u}, v{w}")
            divc(A, h, u, 5); A(f"v_mul_u32_u24 v{w}, 100, v{h}"); A(f"v_add_u32 v{u}, v{u}, v{w}"); A(f"v_add_u32 v{u}, 100, v{u}")
            A(f"v_cmp_gt_u32 s[{sT+10}:{sT+11}], 960, v{it}") if False else None
            A(f"v_mov_b32 v{rem}, v{it}")
            A(f"v_cmp_gt_u32 vcc, 840, v{it}")
            A(f"v_cndmask_b32 v{it}, v{u}, v{it}, vcc"); A(f"v_cndmask_b32 v{cp}, v{cp}, 0, vcc")
            A(f"v_cmp_gt_u32 vcc, 960, v{rem}")
            A(f"v_cndmask_b32 v{it}, 0, v{it}, vcc")
            A(f"v_cndmask_b32 v118, 0, 1, vcc")
        A(f"v_lshlrev_b32 v{GA[i]}, 4, v{it}")
        divc(A, h, it, 105); A(f"v_mul_u32_u24 v{u}, 105, v{h}"); A(f"v_sub_u32 v{rem}, v{it}, v{u}")
        divc(A, e, rem, 5); A(f"v_mul_u32_u24 v{u}, 5, v{e}"); A(f"v_sub_u32 v{dq}, v{rem}, v{u}")
        A(f"v_mul_u32_u24 v{d}, 20, v{h}"); A(f"v_lshl_add_u32 v{d}, v{dq}, 2, v{d}")
        A(f"v_bfe_u32 v{u}, v{d}, 2, 2"); A(f"v_lshlrev_b32 v{u}, 8, v{u}")
        A(f"v_bfe_u32 v{w}, v{d}, 4, 1"); A(f"v_lshl_add_u32 v{u}, v{w}, 3, v{u}")
        A(f"v_lshrrev_b32 v{d}, 5, v{d}")
        A(f"v_lshrrev_b32 v{w}, 2, v{h}"); A(f"v_add3_u32 v{w}, v{w}, v{d}, 20"); A(f"v_lshl_add_u32 v{zr}, v{w}, 10, v{u}")
        A(f"v_and_b32 v{w}, 3, v{h}"); A(f"v_lshl_add_u32 v{zr}, v{w}, 4, v{zr}")
        if i == 3: A(f"v_lshl_add_u32 v{zr}, v{cp}, 6, v{zr}")
        A(f"v_mul_u32_u24 v{w}, 20, v{h}"); A(f"v_add_u32 v{w}, v{w}, v{e}")
        A(f"v_and_b32 v{d}, 1, v{d}"); A(f"v_lshl_add_u32 v{u}, v{d}, 10, v{u}")
        A(f"v_lshrrev_b32 v{d}, 4, v{w}"); A(f"v_lshl_add_u32 v{u}, v{d}, 11, v{u}")
        A(f"v_and_b32 v{w}, 15, v{w}"); A(f"v_lshl_add_u32 v{AD[i]}, v{w}, 4, v{u}")
        A(f"v_cmp_eq_u32 vcc, 20, v{e}")
        A(f"v_cndmask_b32 v{AD[i]}, v{AD[i]}, v{zr}, vcc")
        if i == 3:
            A(f"v_cmp_eq_u32 vcc, 1, v118")
            A(f"v_cndmask_b32 v{AD[i]}, v{trash}, v{AD[i]}, vcc")
            A(f"v_cndmask_b32 v{GA[i]}, v{big}, v{GA[i]}, vcc")
    A(f"v_min_u32 v{u}, 25, v0"); A(f"v_lshrrev_b32 v{w}, 1, v{u}"); A(f"v_and_b32 v{u}, 1, v{u}")
    A(f"v_lshl_add_u32 v{u}, v{w}, 3, v{u}"); A(f"s_lshl_b32 s{t0}, s{sG}, 1"); A(f"v_add_u32 v{u}, s{t0}, v{u}")
    A(f"v_lshlrev_b32 v{u}, 7, v{u}"); A(f"v_add_u32 v{u}, {F_KV}, v{u}")
    A(f"v_lshlrev_b32 v{w}, 4, v{vL}"); A(f"v_add_u32 v{w}, {QF}, v{w}")
    return AD, GA, u, w

def loaderQ_tail(A, cfg, QR):
    AD, GA, vfl, vz = QR
    t0 = sT + 1
    for i in range(4): A(f"v_mov_b32 v{12+i}, 0")
    for i in range(7): A(f"ds_write_b128 v{vz}, v[12:15] offset:{i*4096}")
    A(f"v_mov_b32 v10, {CNT}"); A("v_mov_b32 v11, 1")
    A("s_waitcnt lgkmcnt(0)")
    A("s_mov_b64 exec, 1")
    A(f"ds_add_u32 v10, v11 offset:{4*C_QZ}")
    A("s_mov_b64 exec, -1")
    lds_wait(A, cfg, 10, 11, C_QZ, 4, sleep=1)
    A(f"s_mul_i32 s{t0}, s{sG}, 13440"); A(f"s_add_u32 s{t0}, s{t0}, {G_KV}")
    for _ in range(cfg.kvdelay // 60): A("s_sleep 60")
    if cfg.kvdelay % 60: A(f"s_sleep {cfg.kvdelay % 60}")
    oth = A.newlabel("qo"); go = A.newlabel("qg")
    A(f"s_cmp_lg_u32 s{sWave}, 7"); A(f"s_cbranch_scc1 {oth}")
    poll4(A, cfg, 16, vfl, cfg.qsleep)
    A("v_mov_b32 v11, 1")
    A(f"ds_write_b32 v10, v11 offset:{4*C_RDY}")
    A(f"s_branch {go}")
    A.label(oth)
    lds_wait(A, cfg, 10, 11, C_RDY, 1, sleep=1)
    A.label(go)
    stamp(A, cfg, 4)
    for i in range(4): A(f"buffer_load_dwordx4 v[{52+4*i}:{55+4*i}], v{GA[i]}, s[{sMI}:{sMI+3}], s{t0} offen sc1")
    for i in range(4):
        A(f"s_waitcnt vmcnt({3-i})")
        q = 52 + 4 * i
        A(f"v_cvt_pk_bf16_f32 v{q}, v{q}, v{q+1}"); A(f"v_cvt_pk_bf16_f32 v{q+1}, v{q+2}, v{q+3}")
        A(f"ds_write_b64 v{AD[i]}, v[{q}:{q+1}] offset:{QF}")
    A("s_waitcnt lgkmcnt(0)")
    stamp(A, cfg, 5)
    A("s_barrier")

def p2_plan(cfg):
    D = cfg.D
    return D, 9 - D, 18 - D, cfg.t3, cfg.t4

XT = KVR
def loader2(A, cfg, pf, T):
    lw, t0, t1, t2 = sT, sT + 1, sT + 5, sT + 3
    D, x1, x2, x3, x4 = p2_plan(cfg)
    vF, u, w, vL, vO_, vXs, vC, vI = 20, 22, 23, 24, 25, 26, 29, 30
    vQ = 32
    a, b = LV['a'], LV['b']
    vm = pf.vm
    A(f"s_mov_b32 s{sT+4}, s{pf.lb}"); pf.lb = sT + 4
    nreg = cfg.nregH if T is TH else cfg.nregK
    pf.run(range(18, 18 + nreg - 3), False)
    A(f"s_mul_i32 s{t0}, s{sM2}, 96"); A(f"s_add_u32 s{t1}, s{t0}, 95"); A(f"s_min_u32 s{t1}, s{t1}, 2047")
    A(f"s_mul_i32 s{t2}, s{t0}, 26215"); A(f"s_lshr_b32 s{t2}, s{t2}, 22")
    A(f"s_mul_i32 s{sT+9}, s{t1}, 26215"); A(f"s_lshr_b32 s{sT+9}, s{sT+9}, 22")
    A(f"v_and_b32 v{u}, 15, v0"); A(f"v_min_u32 v{u}, 8, v{u}")
    A(f"v_mov_b32 v{w}, s{t2}"); A(f"v_mov_b32 v{vF}, s{sT+9}"); A("v_cmp_gt_u32 vcc, 16, v0"); A(f"v_cndmask_b32 v{w}, v{vF}, v{w}, vcc")
    A(f"v_lshl_add_u32 v{u}, v{w}, 4, v{u}"); A(f"v_lshlrev_b32 v{u}, 9, v{u}"); A(f"v_add_u32 v{vF}, {F_H}, v{u}")
    A(f"v_mov_b32 v{vC}, {CNT}"); A(f"v_mov_b32 v{vI}, 1")
    want = sT + 6
    A(f"s_cmp_eq_u32 s{sWave}, 7"); A(f"s_cselect_b32 s{want}, 1, 0")
    pf.run(range(18, 18 + nreg), False)
    if cfg.x_st: stamp(A, cfg, 2)
    def go():
        A("s_mov_b64 exec, 1"); A(f"ds_add_u32 v{vC}, v{vI} offset:{4*C_GO}"); A("s_mov_b64 exec, -1")
    def check():
        A(f"v_cmp_ne_u32 vcc, 1, v{vQ}")
        A("s_nop 1")
    st = dict(k=0, pend=False, told=False)
    p0 = cfg.poll0H if T is TH else cfg.poll0K
    trig = cfg.trig if T is TH else 1
    def hook(t):
        st['k'] += 1
        if not st['told'] and x1 in pf.tag and vm.n - pf.tag[x1] >= cfg.thr + 2:
            vm.wait(pf.tag[x1]); go(); st['told'] = True
    pf.hook = hook
    pf.run(range(0, 12), False)
    lds_wait(A, cfg, vC, u, C_FREE, 256, sleep=1)
    pf.run(range(12, 18), False)
    if cfg.x_st: stamp(A, cfg, 10)
    pf.run(range(18, 18 + cfg.nx1), False)
    pf.hook = None
    assert st['told']
    stamp(A, cfg, 4)
    def wait_flags(v, i):
        skip = A.newlabel("np")
        A(f"s_cmp_lg_u32 s{sWave}, 7"); A(f"s_cbranch_scc1 {skip}")
        poll4(A, cfg, vQ, v, cfg.psleep)
        A.label(skip)
        stamp(A, cfg, i)
    A(f"s_mul_i32 s{t2}, s{lw}, 24"); A(f"s_add_u32 s{t2}, s{t2}, s{t0}"); A(f"s_mul_i32 s{t2}, s{t2}, 1280")
    A(f"s_lshl_b32 s{sT+9}, s{sN2}, 7"); A(f"s_add_u32 s{t2}, s{t2}, s{sT+9}")
    A(f"v_mul_u32_u24 v{vXs}, 1280, v{a}"); A(f"v_xor_b32 v{u}, v{a}, v{b}"); A(f"v_lshl_add_u32 v{vXs}, v{u}, 4, v{vXs}")
    A(f"v_add_u32 v{vXs}, s{t2}, v{vXs}")
    A(f"s_lshr_b32 s{t0}, s{t0}, 8"); A(f"s_lshr_b32 s{t1}, s{t1}, 8")
    A(f"v_mov_b32 v{w}, s{t0}"); A(f"v_mov_b32 v{vO_}, s{t1}"); A(f"v_cmp_gt_u32 vcc, 4, v{b}")
    A(f"v_cndmask_b32 v{w}, v{vO_}, v{w}, vcc")
    A(f"v_and_b32 v{u}, 3, v0"); A(f"v_lshl_add_u32 v{u}, v{w}, 2, v{u}"); A(f"v_lshlrev_b32 v{u}, 10, v{u}")
    A(f"v_min_u32 v{w}, 4, v{a}"); A(f"v_lshl_add_u32 v{u}, v{w}, 7, v{u}"); A(f"v_add_u32 v{vO_}, {F_O}, v{u}")
    A(f"s_lshl_b32 s{t0}, s{lw}, 11"); A(f"v_lshl_add_u32 v{vL}, v0, 4, s{t0}")
    hi = [vL, 27, 28]
    A(f"v_add_u32 v27, 65536, v{vL}"); A(f"v_add_u32 v28, 131072, v{vL}")
    def refill(lo, hi_):
        for t in range(lo, hi_ + 1):
            for j in range(2):
                off = b2_slot(t) + j * 1024
                q = RB0 + (t - B2_SLOTS) * 8 + 4 * j
                A(f"ds_write_b128 v{hi[off >> 16]}, v[{q}:{q+3}] offset:{off & 0xffff}")
    A(f"v_add_u32 v{vF}, 128, v{vF}")
    vm.wait(max(pf.tag[x2], pf.tag[B2_SLOTS + x1]))
    lds_wait(A, cfg, vC, u, C_SIG + 2, 4, sleep=2)
    wait_flags(vF, 7)
    A("s_barrier")
    pf.thr = cfg.thr2
    pf.run(range(18, 37), False)
    refill(B2_SLOTS, B2_SLOTS + x1)
    A(f"v_add_u32 v{vF}, 128, v{vF}")
    wait_flags(vF, 8)
    A("s_waitcnt vmcnt(0) lgkmcnt(0)")
    A("s_barrier")
    A(f"s_mul_i32 s{t0}, s{lw}, 3072"); A(f"s_mov_b32 s{t1}, 0")
    for i in range(3):
        A(f"s_add_u32 m0, s{t0}, {XT + i*1024}")
        A(f"buffer_load_dwordx4 v{vXs}, s[{sX}:{sX+3}], s{t1} offen lds")
        A(f"s_add_u32 s{t1}, s{t1}, 10240")
    refill(B2_SLOTS + x1 + 1, B2_SLOTS + x2)
    A("s_waitcnt lgkmcnt(0)")
    A("s_barrier")
    def oload():
        A(f"s_lshl_b32 s{t2}, s{t0}, 3"); A(f"s_bfm_b64 exec, {8*cfg.owin}, s{t2}")
        A(f"buffer_load_dword v{vQ}, v{vO_}, s[{sMI}:{sMI+3}], 0 offen sc1")
        A("s_mov_b64 exec, -1")
    def oreport():
        check()
        A(f"s_ff1_i32_b64 s{t0}, vcc"); A(f"s_lshr_b32 s{t0}, s{t0}, 3")
        A(f"v_mov_b32 v{w}, s{t0}")
        A(f"ds_write_b32 v{vC}, v{w} offset:{4*C_RDY}")
    A(f"s_mov_b32 s{t0}, 0"); A(f"v_mov_b32 v{vQ}, 0")
    l1, l2 = A.newlabel("o1"), A.newlabel("o2")
    A(f"s_cmp_lg_u32 s{sWave}, 7"); A(f"s_cbranch_scc1 {l1}")
    oload()
    A.label(l1)
    refill(B2_SLOTS + x2 + 1, 36)
    A("s_waitcnt vmcnt(0)")
    A(f"s_cmp_lg_u32 s{sWave}, 7"); A(f"s_cbranch_scc1 {l2}")
    oreport()
    A(f"s_min_u32 s{t0}, s{t0}, 4")
    oload()
    A.label(l2)
    A("s_waitcnt lgkmcnt(0)")
    A("s_barrier")
    A(f"s_cmp_lg_u32 s{sWave}, 7"); A("s_cbranch_scc1 L_fin")
    top = A.newlabel("op")
    A(f"s_mov_b32 s{sT+13}, {cfg.spin}")
    A.label(top)
    A("s_waitcnt vmcnt(0)")
    oreport()
    A(f"s_cmp_ge_u32 s{t0}, 5"); A("s_cbranch_scc1 L_fin")
    if cfg.osleep: A(f"s_sleep {cfg.osleep}")
    oload()
    A(f"s_sub_u32 s{sT+13}, s{sT+13}, 1"); A(f"s_cmp_lg_u32 s{sT+13}, 0"); A(f"s_cbranch_scc1 {top}")
    A("s_branch L_fin")

def main2(A, cfg):
    D, x1, x2, x3, x4 = p2_plan(cfg)
    al = Alloc(1, vPOL)
    a, b, c, vO, vE, vEp, vXr, vR, vP, vFl, vFp, kc, vONE2 = [al.get() for _ in range(13)]
    vA = [al.get() for _ in range(3)]
    vW = [al.get() for _ in range(4)]
    accF = [[al.get(4, 4) for _ in range(4)] for _ in range(3)]
    accS = [[al.get(4, 4) for _ in range(4)] for _ in range(3)]
    FX = [[al.get(4, 4) for _ in range(3)] for _ in range(D + 1)]
    FW = [[al.get(4, 4) for _ in range(4)] for _ in range(2)]
    XR = [al.get(4, 4) for _ in range(3)]
    tt = al.get(8, 4)
    t0, t1, wr, kh, ko = sT, sT + 1, sT + 2, sT + 3, sT + 4
    A(f"ds_read_b32 v{vR}, v{vCNT} offset:{4*C_GO}")
    A(f"v_mov_b32 v{vONE2}, 1")
    A(f"s_lshr_b32 s{wr}, s{sWave}, 1"); A(f"s_and_b32 s{kh}, s{sWave}, 1")
    A(f"s_lshl1_add_u32 s{t0}, s{sM2}, s{wr}"); A(f"s_mul_i32 s{t0}, s{t0}, {3*74}"); A(f"s_add_u32 s{t0}, s{t0}, s{kh}")
    A(f"s_lshl_b32 s{t0}, s{t0}, 10")
    A(f"v_lshl_add_u32 v{vA[0]}, v0, 4, s{t0}")
    for mt in range(1, 3): A(f"v_add_u32 v{vA[mt]}, {RT_STRIDE}, v{vA[mt-1]}")
    A(f"s_mov_b32 s{ko}, 0")
    vm = VM(A)
    tagA = {}
    def loadA(t):
        r = []
        if t and t % 2 == 0: r.append(('s', f"s_add_u32 s{ko}, s{ko}, 4096"))
        for mt in range(3):
            q = FX[t % (D + 1)][mt]
            r.append(('v', f"buffer_load_dwordx4 v[{q}:{q+3}], v{vA[mt]}, s[{sACT}:{sACT+3}], s{ko} offen offset:{(t&1)*2048} sc1", t))
        return r
    def put(it):
        if it[0] == 'v': tagA[it[2]] = vm.issue(it[1])
        else: A(it[1])
    stamp(A, cfg, 5)
    lgo = A.newlabel("go"); slow = A.newlabel("slow")
    A(f"s_waitcnt vmcnt({cfg.n_after}) lgkmcnt(0)")
    A(f"v_cmp_ne_u32 vcc, 1, v{vPOL}")
    A(f"v_readfirstlane_b32 s{t0}, v{vR}")
    A("s_cmp_lg_u64 vcc, 0"); A(f"s_cbranch_scc1 {slow}")
    A(f"s_cmp_ge_u32 s{t0}, 4"); A(f"s_cbranch_scc1 {lgo}")
    A.label(slow)
    A(f"buffer_load_dword v{vPOL}, v{vPA}, s[{sMI}:{sMI+3}], 0 offen sc1")
    sig_now(A, C_SIG + 2, sPend, 256); A(f"v_mov_b32 v{vONE2}, 0"); A(f"s_mov_b32 s{sPend}, {OOB}")
    poll(A, cfg, vPOL, vPA, sMI, 1, first_issued=True, sleep=cfg.csleep)
    lds_wait(A, cfg, vCNT, vR, C_GO, 4)
    A.label(lgo)
    stamp(A, cfg, 6)
    for t in range(D):
        for it in loadA(t): put(it)
    A(f"v_lshrrev_b32 v{a}, 2, v0")
    A(f"v_bfe_u32 v{b}, v{a}, 1, 2")
    A(f"s_lshl_b32 s{t0}, s{kh}, 1"); A(f"v_xor_b32 v{b}, s{t0}, v{b}")
    A(f"v_lshlrev_b32 v{a}, 7, v{a}"); A(f"v_lshl_add_u32 v{a}, v{b}, 5, v{a}")
    A(f"v_and_b32 v{b}, 3, v0"); A(f"v_lshl_add_u32 v{a}, v{b}, 3, v{a}")
    A(f"s_lshl_b32 s{t0}, s{kh}, 12"); A(f"v_add_u32 v{vW[0]}, s{t0}, v{a}")
    for j in range(1, 4): A(f"v_xor_b32 v{vW[j]}, {32*j}, v{vW[0]}")
    win = [0]
    def readsW(t):
        r = []
        base = b2_slot(t)
        if base >> 16 != win[0]:
            dlt = ((base >> 16) - win[0]) << 16
            for j in range(4): r.append(f"v_add_u32 v{vW[j]}, {dlt}, v{vW[j]}")
            win[0] = base >> 16
        for j in ((2, 3, 0, 1) if t in (26, 36) else range(4)):
            q = FW[t & 1][j]
            for h in range(2):
                r.append(f"ds_read_b64_tr_b16 v[{q+2*h}:{q+2*h+1}], v{vW[j]} offset:{(base & 0xffff) + h*2048}")
        return r
    for x in readsW(0): A(x)
    A(f"s_lshl1_add_u32 s{t0}, s{sM2}, s{wr}"); A(f"s_mul_i32 s{t0}, s{t0}, {48*1280}")
    A(f"s_lshl1_add_u32 s{t1}, s{sN2}, s{kh}"); A(f"s_lshl_b32 s{t1}, s{t1}, 6"); A(f"s_add_u32 s{t0}, s{t0}, s{t1}")
    A(f"v_and_b32 v{a}, 15, v0")
    A(f"v_bfe_u32 v{b}, v0, 4, 1"); A(f"v_lshrrev_b32 v{c}, 5, v0"); A(f"v_lshl_add_u32 v{b}, v{b}, 1, v{c}")
    A(f"v_mul_u32_u24 v{vO}, 1280, v{a}"); A(f"v_lshl_add_u32 v{vO}, v{b}, 4, v{vO}"); A(f"v_add_u32 v{vO}, s{t0}, v{vO}")
    A(f"s_lshl_b32 s{t0}, s{kh}, 2"); A(f"v_add_u32 v{b}, s{t0}, v{b}"); A(f"v_and_b32 v{c}, 7, v{a}"); A(f"v_xor_b32 v{b}, v{b}, v{c}")
    A(f"v_lshlrev_b32 v{vXr}, 7, v{a}"); A(f"v_lshl_add_u32 v{vXr}, v{b}, 4, v{vXr}")
    A(f"s_mul_i32 s{t0}, s{wr}, 6144"); A(f"s_add_u32 s{t0}, s{t0}, {XT}"); A(f"v_add_u32 v{vXr}, s{t0}, v{vXr}")
    assert x4 >= 21
    ex = b2_slot(19); assert b2_slot(21) == ex + 2 * B2_SZ
    A(f"s_mul_i32 s{t0}, s{sWave}, 6144"); A(f"s_add_u32 s{t0}, s{t0}, {ex}"); A(f"v_lshl_add_u32 v{vE}, v0, 4, s{t0}")
    A(f"s_xor_b32 s{t1}, s{sWave}, 1"); A(f"s_mul_i32 s{t0}, s{t1}, 6144"); A(f"s_add_u32 s{t0}, s{t0}, {ex}"); A(f"v_lshl_add_u32 v{vEp}, v0, 4, s{t0}")
    A(f"s_lshl2_add_u32 s{t0}, s{sWave}, {CNT}"); A(f"v_mov_b32 v{vFl}, s{t0}")
    A(f"s_lshl2_add_u32 s{t0}, s{t1}, {CNT}"); A(f"v_mov_b32 v{vFp}, s{t0}")
    A(f"v_mov_b32 v{kc}, {f2u(-LOG2E)}")
    so = [sT + 8, sT + 9, sT + 10]
    for mt in range(3): A(f"s_mov_b32 s{so[mt]}, {mt*16*1280}")
    gops = []
    for mt in range(3):
        f0 = accF[mt][0]
        gops += [f"v_add_f32 v{f0+i}, v{f0+i}, v{f0+8+i}" for i in range(8)]
        gops += [f"v_exp_f32 v{tt+i}, v{f0+i}" for i in range(8)]
        gops += [f"v_fma_f32 v{tt+i}, v{tt+i}, v{kc}, v{kc}" for i in range(8)]
        gops += [f"v_rcp_f32 v{tt+i}, v{tt+i}" for i in range(8)]
        gops += [f"v_mul_f32 v{f0+i}, v{f0+i}, v{tt+i}" for i in range(8)]
        for i in range(4):
            gops += [f"v_lshlrev_b32 v{f0+8+2*i}, 16, v{XR[mt]+i}", f"v_and_b32 v{f0+9+2*i}, 0xffff0000, v{XR[mt]+i}"]
    tg = cfg.tg
    oround = lambda t: (t - 27) // 2 + 1
    def need_check(t): return t >= 27 and t < 37 and (t - 27) % 2 == 0
    def step(t, loads=True):
        acc = accF if t < 27 else accS
        first = t in (0, 27)
        A("s_waitcnt lgkmcnt(0)")
        if cfg.p2st and t in cfg.p2st: stamp(A, cfg, 1 + cfg.p2st.index(t), late=True)
        if t in (x1, x2, x3, x4): A("s_barrier")
        if loads and need_check(t + D) and t + D > 27:
            lds_wait(A, cfg, vCNT, vR, C_RDY, oround(t + D), first_issued=True)
        if t == 27: A(f"ds_write_b32 v{vFl}, v{vONE} offset:{4*C_EX}")
        if t == tg: lds_wait(A, cfg, vFp, vP, C_EX, 1, first_issued=True)
        if t == 1: vm.issue(sig(A, sPend, 256))
        vm.wait(tagA[t])
        if t == 0:
            stamp(A, cfg, 7)
            A("s_mov_b64 exec, 1")
            A(f"ds_add_rtn_u32 v{vARR}, v{vCNT}, v{vONE2} offset:{4*(C_SIG+2)}")
            A("s_mov_b64 exec, -1")
        if t == 27: stamp(A, cfg, 8)
        fill = []
        if t + 1 < 37: fill += [('s', x) for x in readsW(t + 1)]
        ld = loadA(t + D) if t + D < 37 and loads else []
        mix = []
        while fill or ld:
            if ld: mix.append(ld.pop(0))
            mix += fill[:3]; fill = fill[3:]
        if need_check(t + 1 + D): mix.append(('s', f"ds_read_b32 v{vR}, v{vCNT} offset:{4*C_RDY}"))
        if t == tg - 1: mix.append(('s', f"ds_read_b32 v{vP}, v{vFp} offset:{4*C_EX}"))
        if t == tg:
            for mt in range(3):
                for j in range(2):
                    q = accF[mt][2 + j]
                    mix.append(('s', f"ds_read_b128 v[{q}:{q+3}], v{vEp} offset:{(2*mt+j)*1024}"))
            for mt in range(3): mix.append(('s', f"ds_read_b128 v[{XR[mt]}:{XR[mt]+3}], v{vXr} offset:{mt*2048}"))
        gv = []
        if t > tg:
            n = -(-len(gops) // (37 - t)); gv = gops[:n]; del gops[:n]
        k = 0
        for j in ((2, 3, 0, 1) if t in (26, 36) else range(4)):
            for mt in range(3):
                d = acc[mt][j]; w = FW[t & 1][j]; x = FX[t % (D + 1)][mt]
                c_ = "0" if first else f"v[{d}:{d+3}]"
                A(f"v_mfma_f32_16x16x32_bf16 v[{d}:{d+3}], v[{w}:{w+3}], v[{x}:{x+3}], {c_}")
                k += 1
                n = -(-len(mix) // (12 - k + 1))
                for it in mix[:n]: put(it)
                mix = mix[n:]
                n = -(-len(gv) // (12 - k + 1))
                for x_ in gv[:n]: A(x_)
                gv = gv[n:]
                if t in (26, 36) and k >= 7:
                    jj, m_ = divmod(k - 7, 3); q = acc[m_][2 + jj]
                    A(f"ds_write_b128 v{vEp if t == 36 else vE}, v[{q}:{q+3}] offset:{(2*m_+jj)*1024}")
    ts = 27 - D
    for t in range(ts): step(t)
    A("s_waitcnt lgkmcnt(0)")
    A(f"v_readfirstlane_b32 s{t0}, v{vR}")
    A(f"s_cmp_ge_u32 s{t0}, 1"); A("s_cbranch_scc1 L_fast")
    save = (vm.n, vm.done, dict(tagA), win[0])
    for t in range(ts, 27): step(t, loads=False)
    for t in range(27, 27 + D):
        if need_check(t): lds_wait(A, cfg, vCNT, vR, C_RDY, oround(t))
        for it in loadA(t): put(it)
    A("s_branch L_join")
    A.label("L_fast")
    n_slow = vm.n
    vm.n, vm.done, tg_, win[0] = save; tagA.clear(); tagA.update(tg_)
    for t in range(ts, 27): step(t)
    assert vm.n == n_slow
    A.label("L_join")
    for t in range(27, 37): step(t)
    stamp(A, cfg, 9)
    A("s_waitcnt lgkmcnt(0)")
    A(f"ds_write_b32 v{vFl}, v{vONE} offset:{4*C_EX + 16}")
    lds_wait(A, cfg, vFp, vP, C_EX + 4, 1)
    for mt in range(3):
        for j in range(2):
            q = accS[mt][2 + j]
            A(f"ds_read_b128 v[{q}:{q+3}], v{vE} offset:{(2*mt+j)*1024}")
    for mt in range(3):
        f0 = accF[mt][0]; s0 = accS[mt][0]
        A(f"s_waitcnt lgkmcnt({4 - 2*mt})")
        for p in range(4): A(f"v_pk_add_f32 {p2(s0+2*p)}, {p2(s0+2*p)}, {p2(s0+8+2*p)}")
        for p in range(4): A(f"v_pk_mul_f32 {p2(f0+2*p)}, {p2(f0+2*p)}, {p2(s0+2*p)}")
        for r in range(4): A(f"v_permlane16_swap_b32 v{f0+r}, v{f0+4+r}")
        for p in range(4): A(f"v_pk_add_f32 {p2(f0+2*p)}, {p2(f0+2*p)}, {p2(f0+8+2*p)}")
        for i in range(4): A(f"v_cvt_pk_bf16_f32 v{XR[mt]+i}, v{f0+2*i}, v{f0+2*i+1}")
        A(f"buffer_store_dwordx4 v[{XR[mt]}:{XR[mt]+3}], v{vO}, s[{sOUT}:{sOUT+3}], s{so[mt]} offen")
    stamp(A, cfg, 10)

def build(cfg):
    A = Asm()
    prologue(A, cfg)
    loader_head(A, cfg)
    A(f"s_cmp_eq_u32 s{sRole}, 1"); A("s_cbranch_scc1 L_lK")
    A(f"s_cmp_eq_u32 s{sRole}, 2"); A("s_cbranch_scc1 L_lQ")
    A("s_branch L_lH")
    A.label("L_cons")
    early_issue(A, cfg)
    A(f"s_cmp_eq_u32 s{sRole}, 1"); A("s_cbranch_scc1 L_cK")
    A(f"s_cmp_eq_u32 s{sRole}, 2"); A("s_cbranch_scc1 L_cQ")
    R = main1(A, cfg, TH, pre_H); epi_H(A, cfg, R)
    A(f"s_cmp_lg_u32 s{sP2}, 0"); A("s_cbranch_scc1 L_c2")
    sig_now(A, C_SIG + 2, sPend, 256)
    A("s_branch L_fin")
    A.label("L_cK")
    R = main1(A, cfg, TK, pre_K); epi_K(A, cfg, R)
    A(f"s_cmp_eq_u32 s{sP2}, 0"); A("s_cbranch_scc1 L_fin")
    A.label("L_c2")
    cfg.mute = True
    main2(A, cfg)
    cfg.mute = False
    A("s_branch L_fin")
    A.label("L_cQ")
    R = main1(A, cfg, TQ, pre_Q); epi_Q(A, cfg, R)
    A("s_branch L_fin")
    A.label("L_lH")
    cfg.in_loader = True
    loader1(A, cfg, TH)
    A.label("L_lK")
    loader1(A, cfg, TK)
    A.label("L_lQ")
    vL = loader1(A, cfg, TQ)
    loaderQ_tail(A, cfg, vL)
    A.label("L_fin")
    stamp(A, cfg, 11)
    dump_stamps(A, cfg)
    A.label("L_end")
    body = A.text()
    head = open(os.path.join(os.path.dirname(os.path.abspath(__file__)), "..", "cdna_kernels", NAME + ".s.ref")).read().split("; @launch")[0]
    out = head + f"; @launch grid=(256,1,1) block=(512,1,1) lds={LDS_BYTES}\n"
    out += f""".amdgcn_target "amdgcn-amd-amdhsa--gfx950"
.text
.globl {KN}
.p2align 8
.type {KN},@function
{KN}:
{body}
    s_endpgm
.section .rodata,"a"
.p2align 6
.amdhsa_kernel {KN}
  .amdhsa_next_free_vgpr 256
  .amdhsa_next_free_sgpr 102
  .amdhsa_accum_offset 256
  .amdhsa_group_segment_fixed_size 0
  .amdhsa_kernarg_size 72
  .amdhsa_user_sgpr_count 2
  .amdhsa_user_sgpr_kernarg_segment_ptr 1
  .amdhsa_system_sgpr_workgroup_id_x 1
.end_amdhsa_kernel
"""
    return out, A

def make(**kw):
    cfg = Cfg()
    for k, v in kw.items():
        assert hasattr(cfg, k), k
        setattr(cfg, k, v)
    return build(cfg)[0]

if __name__ == "__main__":
    cfg = Cfg()
    outp = None
    for a in sys.argv[1:]:
        if a == "--diag": cfg.diag = True
        elif a.startswith("--stop="): cfg.stop_after = a[7:]
        elif "=" in a and a.startswith("--"):
            k, v = a[2:].split("="); setattr(cfg, k, eval(v))
        else: outp = a
    s, A = build(cfg)
    open(outp, "w").write(s)
    print(f"wrote {outp}: {len(A.L)} lines, {A.nops} nops inserted")
```

```python
import gen, sys
dbg = [(None,0,0,'min'), (None,0,0,'max'), (None,0,0,'sum'),
       (1,0,1,'sum'), (1,0,2,'sum'), (1,4,2,'sum'), (1,0,3,'sum'), (1,0,5,'sum'), (1,0,7,'sum'), (1,0,8,'sum'), (1,0,10,'sum'),
       (2,0,3,'sum'), (2,0,6,'sum'), (0,0,3,'max'), (0,0,4,'max'), (None,0,11,'max')]
kw = eval(sys.argv[2]) if len(sys.argv) > 2 else {}
open(sys.argv[1], "w").write(gen.make(diag=True, dbg=dbg, **kw))
```
